```python
import torch

def _softmax(x, axis=-1):
    return torch.softmax(x, dim=axis)
def _gelu(x):
    return torch.nn.functional.gelu(x, approximate="tanh")
def _silu(x):
    return torch.nn.functional.silu(x)
def _sigmoid(x):
    return torch.sigmoid(x)
def _layernorm(x, axis=-1, eps=1e-5):
    m = x.mean(dim=axis, keepdim=True)
    v = x.var(dim=axis, keepdim=True, unbiased=False)
    return (x - m) / torch.sqrt(v + eps)
def _scatter_add(tgt, idx, src, axis=0):
    return tgt.clone().index_add_(axis, idx, src)
def _segment_sum(src, seg, n):
    out = torch.zeros((n,) + src.shape[1:], dtype=src.dtype)
    return out.index_add_(0, seg, src)
def _pad(x, pw):
    flat = tuple(v for pair in reversed(pw) for v in pair)
    return torch.nn.functional.pad(x, flat)

kernel_name = 'recurrent_scan__ssm_conv_h3__dense_activation_relu__prompt'

def setup_inputs():

    _w = (lambda a: (lambda t: t.to(torch.bfloat16) if t.is_floating_point() else t)(torch.as_tensor(a)))
    def _A_setup():
        B, S, D = 1, 2048, 512
        ks = 4
        return {
            "q": _w((lambda *s: torch.randn(*s, dtype=torch.bfloat16) * 0.05)(B, S, D)),
            "k": _w((lambda *s: torch.randn(*s, dtype=torch.bfloat16) * 0.2)(B, S, D)),
            "v": _w((lambda *s: torch.randn(*s, dtype=torch.bfloat16) * 0.2)(B, S, D)),
            "shift_k": _w((lambda *s: torch.randn(*s, dtype=torch.bfloat16) * 0.2)(D, ks) * 0.5),
            "ssm_k": _w((lambda *s: torch.randn(*s, dtype=torch.bfloat16) * 0.2)(D, S) * (1.0 / S ** 0.5)),
            "ssm_D": _w((lambda *s: torch.randn(*s, dtype=torch.bfloat16) * 0.2)(D)),
        }
    _A_in = _A_setup()

    def _B_setup():
        B, S, D, Dff = 1, 2048, 512, 1376
        return {
            "x": _w((lambda *s: torch.randn(*s, dtype=torch.bfloat16) * 0.05)(B, S, D)),
            "w1": _w((lambda *s: torch.randn(*s, dtype=torch.bfloat16) * 0.1)(D, Dff)),
            "w2": _w((lambda *s: torch.randn(*s, dtype=torch.bfloat16) * 0.1)(Dff, D)),
        }
    _B_in = _B_setup()

    return {
        "A_q": _A_in["q"],
        "A_k": _A_in["k"],
        "A_v": _A_in["v"],
        "A_shift_k": _A_in["shift_k"],
        "A_ssm_k": _A_in["ssm_k"],
        "A_ssm_D": _A_in["ssm_D"],
        "B_x": _B_in["x"],
        "B_w1": _B_in["w1"],
        "B_w2": _B_in["w2"],
    }

def reference(A_q, A_k, A_v, A_shift_k, A_ssm_k, A_ssm_D, B_x, B_w1, B_w2):
    def _A_ref(q, k, v, shift_k, ssm_k, ssm_D):
        B, S, D = q.shape
        ks = shift_k.shape[-1]
        k_pad = _pad(k, ((0, 0), (ks - 1, 0), (0, 0)))
        k_shift = torch.zeros_like(k)
        for t in range(ks):
            k_shift = k_shift + k_pad[:, t:t + S, :] * shift_k[:, ks - 1 - t][None, None, :]
        kv = k_shift * v
        L = 2 * S
        kv_pad = _pad(kv, ((0, 0), (0, S), (0, 0)))
        kf_pad = _pad(ssm_k, ((0, 0), (0, S)))
        kv_f = (lambda x, axes=(-2,-1): torch.fft.rfft2(x.float(), dim=axes))(kv_pad[:, None, :, :], axes=(1, 2))
        kf_f = (lambda x, axes=(-2,-1): torch.fft.rfft2(x.float(), dim=axes))(kf_pad[:, None, :], axes=(1, 2))
        kf_f = (lambda x, *d: x.permute(*d))(kf_f, 1, 2, 0)
        y_f = kv_f * kf_f[None, :, :, :]
        y = (lambda x, s, axes=(-2,-1): torch.fft.irfft2(x, s=s, dim=axes).to(torch.bfloat16))(y_f, (1, L), axes=(1, 2))[:, 0, :S, :]
        y = y + kv * ssm_D[None, None, :]
        return q * y

    def _B_ref(x, w1, w2):
        h = torch.einsum("bsd,df->bsf", x, w1)
        zero = torch.zeros_like(h)
        h = torch.maximum(h, zero)
        return torch.einsum("bsf,fd->bsd", h, w2)

    x = A_q
    xn = _layernorm(x, axis=-1)
    s = _A_ref(xn, A_k, A_v, A_shift_k, A_ssm_k, A_ssm_D)
    g = _silu(_B_ref(xn, B_w1, B_w2))
    return x + s * g
```

```python
import re

class Asm:
    def __init__(self):
        self.lines = []
    def __call__(self, s):
        for l in s.split("\n"):
            l = l.strip()
            if l: self.lines.append("    " + l)
    def label(self, l): self.lines.append(l + ":")
    def raw(self, l): self.lines.append(l)
    def comment(self, c): self.lines.append("    ; " + c)

def v(n, c=1): return "v%d" % n if c == 1 else "v[%d:%d]" % (n, n + c - 1)
def a(n, c=1): return "a%d" % n if c == 1 else "a[%d:%d]" % (n, n + c - 1)
def s(n, c=1): return "s%d" % n if c == 1 else "s[%d:%d]" % (n, n + c - 1)

_reg = re.compile(r"^(-|\|)?([vas])(?:(\d+)|\[(\d+):(\d+)\])\|?$")
def regs(tok):
    tok = tok.strip()
    if tok in ("vcc",): return {"vcc"}
    if tok in ("vcc_lo", "vcc_hi"): return {"vcc"}
    if tok == "exec": return {"exec"}
    if tok == "m0": return {"m0"}
    m = _reg.match(tok)
    if not m: return set()
    f = m.group(2)
    if m.group(3) is not None: lo = hi = int(m.group(3))
    else: lo, hi = int(m.group(4)), int(m.group(5))
    return {"%s%d" % (f, i) for i in range(lo, hi + 1)}

TRANS = ("v_exp_f32", "v_log_f32", "v_rcp_f32", "v_rsq_f32", "v_sqrt_f32", "v_sin_f32", "v_cos_f32", "v_rcp_iflag_f32")

class Ins:
    def __init__(self, text):
        self.text = text
        t = text.split(";")[0].strip()
        parts = t.split(None, 1)
        self.op = parts[0]
        rest = parts[1] if len(parts) > 1 else ""
        ops = [o.strip() for o in rest.split(",")] if rest else []
        mods = ""
        if ops:
            last = ops[-1].split()
            if len(last) > 1:
                ops[-1] = last[0]; mods = " ".join(last[1:])
        self.ops = ops; self.mods = mods
        op = self.op
        self.kind = "other"
        self.w = set(); self.r = set()
        self.mfma_passes = 0
        self.states = 1
        R = lambda i: regs(ops[i]) if i < len(ops) else set()
        allr = set()
        for o in ops: allr |= regs(o)
        if op == "s_nop":
            self.kind = "nop"; self.states = int(ops[0], 0) + 1
        elif op.startswith("v_mfma"):
            self.kind = "mfma"; self.w = R(0); self.A = R(1); self.B = R(2); self.C = R(3)
            self.r = self.A | self.B | self.C
            self.mfma_passes = 8 if "32x32" in op else 4
        elif op.startswith("v_"):
            self.kind = "valu"
            base = op.replace("_e32", "").replace("_e64", "").replace("_dpp", "").replace("_sdwa", "")
            self.base = base
            self.dpp = ("row_" in t) or ("quad_perm" in t) or op.endswith("_dpp") or ("wave_" in t)
            if base.startswith("v_cmp"):
                self.w = R(0); self.r = R(1) | R(2)
                if base.startswith("v_cmpx"): self.w |= {"exec"}
            elif base in ("v_add_co_u32", "v_sub_co_u32", "v_subrev_co_u32"):
                self.w = R(0) | R(1); self.r = R(2) | R(3)
            elif base in ("v_addc_co_u32", "v_subb_co_u32"):
                self.w = R(0) | R(1); self.r = R(2) | R(3) | R(4)
            elif base.startswith("v_permlane"):
                self.w = R(0) | R(1); self.r = R(0) | R(1)
            elif base in ("v_fmac_f32", "v_dot2c_f32_bf16", "v_mac_f32"):
                self.w = R(0); self.r = R(0) | R(1) | R(2)
            elif base == "v_cndmask_b32":
                self.w = R(0); self.r = R(1) | R(2) | (R(3) if len(ops) > 3 else {"vcc"})
            elif base == "v_writelane_b32":
                self.w = R(0); self.r = R(0) | R(1) | R(2)
            else:
                self.w = R(0)
                for i in range(1, len(ops)): self.r |= R(i)
            if self.dpp: self.r |= R(0)
        elif op.startswith("buffer_") or op.startswith("global_") or op.startswith("flat_"):
            self.kind = "vmem"
            lds = (" lds" in (" " + t + " ")) or "load_lds" in op
            self.lds = lds
            if op in ("buffer_inv", "buffer_wbl2"):
                pass
            elif "store" in op:
                self.r = allr
                self.data = R(0) if op.startswith("buffer_") else R(1)
                self.wide = ("x3" in op or "x4" in op)
            elif "atomic" in op:
                self.r = allr
                if "sc0" in t: self.w = R(0)
            elif lds:
                self.r = allr | {"m0"}
            else:
                self.w = R(0)
                for i in range(1, len(ops)): self.r |= R(i)
        elif op.startswith("ds_"):
            self.kind = "ds"
            if op.startswith("ds_read") or op.startswith("ds_bpermute") or op.startswith("ds_swizzle") or op.startswith("ds_permute"):
                self.w = R(0)
                for i in range(1, len(ops)): self.r |= R(i)
            else:
                self.r = allr
        elif op.startswith("s_"):
            self.kind = "salu"
            if op.startswith("s_cmp") or op.startswith("s_cbranch") or op in ("s_branch", "s_waitcnt", "s_barrier", "s_endpgm", "s_sleep", "s_setprio", "s_bitcmp1_b32", "s_bitcmp0_b32"):
                self.r = allr
            else:
                self.w = R(0)
                for i in range(1, len(ops)): self.r |= R(i)
                if "saveexec" in op: self.w |= {"exec"}; self.r |= {"exec"}

def isv(rs): return {r for r in rs if r[0] in "va" and r != "vcc"}
def iss(rs): return {r for r in rs if (r[0] == "s") or r in ("vcc", "m0", "exec")}

def need(p, c):
    n = 0
    if p.kind == "valu":
        pv = isv(p.w); ps = iss(p.w)
        if c.kind == "mfma" and pv & c.r: n = max(n, 2)
        if c.kind == "valu":
            if c.dpp and pv & c.r: n = max(n, 2)
            if c.base in ("v_readlane_b32", "v_readfirstlane_b32") and pv & c.r: n = max(n, 1)
            if c.base.startswith("v_permlane") and pv & c.r: n = max(n, 2)
            if ps & c.r:
                n = max(n, 2)
                if c.base in ("v_readlane_b32", "v_writelane_b32"): n = max(n, 4)
            if p.base in TRANS and c.base not in TRANS and pv & c.r: n = max(n, 1)
            if "exec" in p.w and c.dpp: n = max(n, 5)
        if c.kind == "vmem" and (ps & c.r): n = max(n, 5)
        if c.kind == "mfma" and "exec" in p.w: n = max(n, 4)
        if c.kind == "salu" and (ps & c.r): n = max(n, 1)
    if p.kind == "mfma":
        P = p.mfma_passes
        if c.kind == "mfma":
            if p.w & (c.A | c.B): n = max(n, {4: 8, 8: 12}[P])
            if p.w & c.C:
                if not (p.w == c.C and c.mfma_passes == P): n = max(n, {4: 6, 8: 10}[P])
        elif c.kind in ("valu", "vmem", "ds"):
            if p.w & (c.r | c.w): n = max(n, {4: 8, 8: 12}[P])
            if c.kind == "valu" and (p.C & c.w): n = max(n, {4: 3, 8: 7}[P])
    if p.kind == "vmem" and getattr(p, "wide", False):
        if c.kind == "valu" and (p.data & c.w): n = max(n, 2)
        elif c.kind in ("ds", "vmem") and (p.data & c.w): n = max(n, 1)
    if p.kind == "ds" and p.op.startswith("ds_write") and ("b128" in p.op or "b96" in p.op):
        pass
    if p.kind == "salu" and "m0" in p.w:
        if c.kind == "vmem" and getattr(c, "lds", False): n = max(n, 1)
    return n

def is_ins(line):
    t = line.split(";")[0].strip()
    if not t or t.endswith(":") or t.startswith("."): return False
    return True

def pad_hazards(lines, look=24, verbose=False):
    out = []; hist = []
    added = 0
    for line in lines:
        if not is_ins(line):
            out.append(line); continue
        c = Ins(line)
        req = 0; dist = 0
        for p in reversed(hist[-look:]):
            n = need(p, c)
            if n - dist > req: req = n - dist
            dist += p.states
            if dist >= 20: break
        if req > 0:
            nop = "    s_nop %d" % (req - 1)
            out.append(nop + "    ; auto hazard pad"); hist.append(Ins(nop)); added += 1
        out.append(line); hist.append(c)
        if c.op in ("s_endpgm", "s_branch"): hist = []
    labels = {}
    for i, l in enumerate(out):
        t = l.split(";")[0].strip()
        if t.endswith(":"): labels[t[:-1]] = i
    problems = []
    for i, l in enumerate(out):
        if not is_ins(l): continue
        c = Ins(l)
        if c.op.startswith("s_cbranch") or c.op == "s_branch":
            tgt = c.ops[0]
            if tgt not in labels: continue
            tail = [Ins(x) for x in out[max(0, i - 60):i + 1] if is_ins(x)][-look:]
            head = [Ins(x) for x in out[labels[tgt]:labels[tgt] + 60] if is_ins(x)][:look]
            d0 = 0
            for hi, h in enumerate(head):
                dist = d0
                for p in reversed(tail):
                    n = need(p, h)
                    if n > dist: problems.append((tgt, p.text.strip(), h.text.strip(), n, dist))
                    dist += p.states
                    if dist >= 20: break
                d0 += h.states
                if d0 >= 20 or h.op in ("s_branch", "s_endpgm"): break
    for pr in problems: print("HAZARD across branch to %s: [%s] -> [%s] needs %d has %d" % pr)
    return out, added, problems
```

```python
import sys
from asmlib import *

KN = "recurrent_scan__ssm_conv_h3__dense_activation_relu__prompt"
WS_XN = 0x000000; WS_KVT = 0x200000; WS_H = 0x400000; WS_Y2 = 0xA00000; WS_FLAG = 0xC00000

S_WG = 2; S_WV = 3; S_XCD = 4; S_J = 5; S_CL = 6; S_MEM = 7
P_Q, P_K, P_V, P_SK, P_SSMK, P_D, P_BX, P_W1 = 24, 26, 28, 30, 32, 34, 36, 38
P_W2, P_OUT, P_DBG, P_WS = 40, 42, 44, 46

def srd(A, d, ptr, nbytes, off=0):
    if off:
        A("s_add_u32 s%d, s%d, 0x%x" % (d, ptr, off))
        A("s_addc_u32 s%d, s%d, 0" % (d + 1, ptr + 1))
    else:
        A("s_mov_b32 s%d, s%d" % (d, ptr))
        A("s_mov_b32 s%d, s%d" % (d + 1, ptr + 1))
    A("s_mov_b32 s%d, 0x%x" % (d + 2, nbytes))
    A("s_mov_b32 s%d, 0x20000" % (d + 3))

def prologue(A, name):
    A.raw(".globl %s" % name)
    A.raw(".p2align 8")
    A.raw(".type %s,@function" % name)
    A.label(name)
    A("s_cmp_ge_u32 s2, 256")
    A("s_cbranch_scc1 L_end_%s" % name)
    A("s_load_dwordx16 s[24:39], s[0:1], 0")
    A("s_load_dwordx8 s[40:47], s[0:1], 64")
    A("v_lshrrev_b32 v1, 6, v0")
    A("s_and_b32 s%d, s2, 7" % S_XCD)
    A("s_lshr_b32 s%d, s2, 3" % S_J)
    A("v_readfirstlane_b32 s%d, v1" % S_WV)
    A("v_and_b32 v1, 63, v0")
    A("s_and_b32 s%d, s%d, 1" % (S_CL, S_J))
    A("s_lshl_b32 s48, s%d, 1" % S_XCD)
    A("s_add_u32 s%d, s%d, s48" % (S_CL, S_CL))
    A("s_lshr_b32 s%d, s%d, 1" % (S_MEM, S_J))
    A("s_waitcnt lgkmcnt(0)")

def epilogue(A, name):
    A.label("L_end_%s" % name)
    A("s_endpgm")

def kdesc(name, vgpr, agpr=0, sgpr=102):
    acc = (vgpr + 3) // 4 * 4
    nfv = acc + agpr if agpr else vgpr
    return "\n".join([
        ".amdhsa_kernel %s" % name,
        "  .amdhsa_next_free_vgpr %d" % nfv,
        "  .amdhsa_next_free_sgpr %d" % sgpr,
        "  .amdhsa_accum_offset %d" % acc,
        "  .amdhsa_group_segment_fixed_size 0",
        "  .amdhsa_kernarg_size 96",
        "  .amdhsa_user_sgpr_count 2",
        "  .amdhsa_user_sgpr_kernarg_segment_ptr 1",
        "  .amdhsa_system_sgpr_workgroup_id_x 1",
        "  .amdhsa_float_denorm_mode_32 3",
        "  .amdhsa_float_denorm_mode_16_64 3",
        ".end_amdhsa_kernel"])

def wave_reduce(A, vs, sdst):
    steps = ["row_shr:1 row_mask:0xf bank_mask:0xf bound_ctrl:0", "row_shr:2 row_mask:0xf bank_mask:0xf bound_ctrl:0",
             "row_shr:4 row_mask:0xf bank_mask:0xf bound_ctrl:0", "row_shr:8 row_mask:0xf bank_mask:0xf bound_ctrl:0",
             "row_bcast:15 row_mask:0xa bank_mask:0xf", "row_bcast:31 row_mask:0xc bank_mask:0xf"]
    for st in steps:
        for r in vs:
            A("v_add_f32_dpp v%d, v%d, v%d %s" % (r, r, r, st))
    for r, d in zip(vs, sdst):
        A("v_readlane_b32 s%d, v%d, 63" % (d, r))

def bf16_round(A, dst, src):
    A("v_cvt_pk_bf16_f32 v%d, v%d, v%d" % (dst, src, src))
    A("v_and_b32 v%d, 0xffff0000, v%d" % (dst, dst))

def unpack8(A, dst, src):
    for i in range(4):
        A("v_lshlrev_b32 v%d, 16, v%d" % (dst + 2 * i, src + i))
        A("v_and_b32 v%d, 0xffff0000, v%d" % (dst + 2 * i + 1, src + i))

LDS_T = 0

def phase_prep(A, sc=""):
    SR_X, SR_K, SR_V, SR_W = 8, 12, 16, 20
    srd(A, SR_X, P_Q, 0x200000); srd(A, SR_K, P_K, 0x200000); srd(A, SR_V, P_V, 0x200000); srd(A, SR_W, P_SK, 4096)
    A("s_lshl_b32 s48, s%d, 7" % S_CL)
    A("s_lshl_b32 s49, s%d, 3" % S_MEM)
    A("s_add_u32 s48, s48, s49")
    A("s_lshl_b32 s49, s%d, 1" % S_WV)
    A("s_add_u32 s48, s48, s49")
    A("s_lshl_b32 s50, s48, 10")
    VXO = 2
    A("v_lshlrev_b32 v%d, 4, v1" % VXO)
    X0, X1 = 4, 8
    A("buffer_load_dwordx4 v[%d:%d], v%d, s[%d:%d], s50 offen" % (X0, X0 + 3, VXO, SR_X, SR_X + 3))
    A("buffer_load_dwordx4 v[%d:%d], v%d, s[%d:%d], s50 offen offset:1024" % (X1, X1 + 3, VXO, SR_X, SR_X + 3))
    VRP, VCG, VKO = 12, 13, 14
    A("v_lshrrev_b32 v%d, 3, v0" % VRP)
    A("v_and_b32 v%d, 7, v0" % VCG)
    A("s_lshl_b32 s51, s%d, 6" % S_J)
    A("s_lshl_b32 s52, s%d, 7" % S_XCD)
    A("v_lshlrev_b32 v%d, 1, v%d" % (VKO, VRP))
    A("v_add_u32 v%d, s51, v%d" % (VKO, VKO))
    A("v_lshlrev_b32 v%d, 10, v%d" % (VKO, VKO))
    A("v_lshl_add_u32 v%d, v%d, 4, v%d" % (VKO, VCG, VKO))
    A("v_add_u32 v%d, s52, v%d" % (VKO, VKO))
    KR = 16
    VR = 36
    WR = 44
    TA = 60
    for r in range(5):
        A("v_add_u32 v%d, %d, v%d" % (TA + r, (r - 3) * 1024 & 0xffffffff, VKO) if r != 3 else "v_mov_b32 v%d, v%d" % (TA + r, VKO))
    for r in range(5):
        A("buffer_load_dwordx4 v[%d:%d], v%d, s[%d:%d], 0 offen" % (KR + 4 * r, KR + 4 * r + 3, TA + r, SR_K, SR_K + 3))
    A("buffer_load_dwordx4 v[%d:%d], v%d, s[%d:%d], 0 offen" % (VR, VR + 3, VKO, SR_V, SR_V + 3))
    A("buffer_load_dwordx4 v[%d:%d], v%d, s[%d:%d], 0 offen offset:1024" % (VR + 4, VR + 7, VKO, SR_V, SR_V + 3))
    VWO = 65
    A("v_lshlrev_b32 v%d, 6, v%d" % (VWO, VCG))
    A("s_lshl_b32 s53, s%d, 9" % S_XCD)
    for q in range(4):
        A("buffer_load_dwordx4 v[%d:%d], v%d, s[%d:%d], s53 offen offset:%d" % (WR + 4 * q, WR + 4 * q + 3, VWO, SR_W, SR_W + 3, 16 * q))
    A("s_waitcnt vmcnt(11)")
    U0, U1 = 70, 78
    unpack8(A, U0, X0); unpack8(A, U1, X1)
    R0, R1 = 86, 87
    for (U, R) in ((U0, R0), (U1, R1)):
        A("v_add_f32 v%d, v%d, v%d" % (R, U, U + 1))
    for i in range(2, 8):
        for (U, R) in ((U0, R0), (U1, R1)):
            A("v_add_f32 v%d, v%d, v%d" % (R, R, U + i))
    wave_reduce(A, [R0, R1], [54, 55])
    A("s_mov_b32 s56, 0x3b000000")
    M0_, M1_ = 88, 89
    A("v_mov_b32 v%d, s54" % M0_); A("v_mov_b32 v%d, s55" % M1_)
    A("v_mul_f32 v%d, s56, v%d" % (M0_, M0_)); A("v_mul_f32 v%d, s56, v%d" % (M1_, M1_))
    T0, T1 = 90, 91
    for i in range(8):
        for (U, R, M, T) in ((U0, R0, M0_, T0), (U1, R1, M1_, T1)):
            A("v_sub_f32 v%d, v%d, v%d" % (T, U + i, M))
            if i == 0: A("v_mul_f32 v%d, v%d, v%d" % (R, T, T))
            else: A("v_fmac_f32 v%d, v%d, v%d" % (R, T, T))
    wave_reduce(A, [R0, R1], [54, 55])
    A("v_mov_b32 v%d, s54" % R0); A("v_mov_b32 v%d, s55" % R1)
    A("s_mov_b32 s57, 0x3727c5ac")
    for (R, M) in ((R0, M0_), (R1, M1_)):
        A("v_mul_f32 v%d, s56, v%d" % (R, R))
        bf16_round(A, R, R)
        A("v_add_f32 v%d, s57, v%d" % (R, R))
        bf16_round(A, R, R)
        A("v_sqrt_f32 v%d, v%d" % (R, R))
        bf16_round(A, R, R)
        A("v_rcp_f32 v%d, v%d" % (R, R))
        bf16_round(A, M, M)
    for (U, R, M, X) in ((U0, R0, M0_, X0), (U1, R1, M1_, X1)):
        for i in range(8):
            A("v_sub_f32 v%d, v%d, v%d" % (U + i, U + i, M))
        for i in range(4):
            A("v_cvt_pk_bf16_f32 v%d, v%d, v%d" % (X + i, U + 2 * i, U + 2 * i + 1))
        unpack8(A, U, X)
        for i in range(8):
            A("v_mul_f32 v%d, v%d, v%d" % (U + i, U + i, R))
        for i in range(4):
            A("v_cvt_pk_bf16_f32 v%d, v%d, v%d" % (X + i, U + 2 * i, U + 2 * i + 1))
    SR_XN = 8
    srd(A, SR_XN, P_WS, 0x200000, WS_XN)
    A("buffer_store_dwordx4 v[%d:%d], v%d, s[%d:%d], s50 offen %s" % (X0, X0 + 3, VXO, SR_XN, SR_XN + 3, sc))
    A("buffer_store_dwordx4 v[%d:%d], v%d, s[%d:%d], s50 offen offset:1024 %s" % (X1, X1 + 3, VXO, SR_XN, SR_XN + 3, sc))
    A("s_waitcnt vmcnt(2)")
    WF = 96
    for c in range(8):
        A("v_lshlrev_b32 v%d, 16, v%d" % (WF + 4 * c + 0, WR + 2 * c))
        A("v_and_b32 v%d, 0xffff0000, v%d" % (WF + 4 * c + 1, WR + 2 * c))
        A("v_lshlrev_b32 v%d, 16, v%d" % (WF + 4 * c + 2, WR + 2 * c + 1))
        A("v_and_b32 v%d, 0xffff0000, v%d" % (WF + 4 * c + 3, WR + 2 * c + 1))
    KF = 128
    for r in range(5): unpack8(A, KF + 8 * r, KR + 4 * r)
    VF = 168
    for r in range(2): unpack8(A, VF + 8 * r, VR + 4 * r)
    AC = 184
    for o in range(2):
        for c in range(8):
            A("v_mul_f32 v%d, v%d, v%d" % (AC + 8 * o + c, KF + 8 * (o + 0) + c, WF + 4 * c + 3))
        for j in (2, 1, 0):
            for c in range(8):
                A("v_fmac_f32 v%d, v%d, v%d" % (AC + 8 * o + c, KF + 8 * (3 + o - j) + c, WF + 4 * c + j))
        for c in range(8):
            A("v_mul_f32 v%d, v%d, v%d" % (AC + 8 * o + c, AC + 8 * o + c, VF + 8 * o + c))
    PK = 200
    for c in range(8):
        A("v_cvt_pk_bf16_f32 v%d, v%d, v%d" % (PK + c, AC + 8 + c, AC + c))
    VP, VA = 208, 209
    A("v_sub_u32 v%d, 31, v%d" % (VP, VRP))
    A("v_lshrrev_b32 v%d, 2, v%d" % (VA, VP))
    A("v_xor_b32 v%d, v%d, v%d" % (VA, VA, VCG))
    A("v_lshlrev_b32 v%d, 4, v%d" % (VA, VA))
    A("v_and_b32 v%d, 3, v%d" % (VP, VP))
    A("v_lshl_add_u32 v%d, v%d, 2, v%d" % (VA, VP, VA))
    A("v_lshl_add_u32 v%d, v%d, 10, v%d" % (VA, VCG, VA))
    for c in range(8):
        A("ds_write_b32 v%d, v%d offset:%d" % (VA, PK + c, LDS_T + 128 * c))
    A("s_waitcnt lgkmcnt(0)")
    A("s_barrier")
    VB = 210
    A("v_lshrrev_b32 v%d, 3, v%d" % (VB, VRP))
    A("v_xor_b32 v%d, v%d, v%d" % (VB, VB, VCG))
    A("v_lshlrev_b32 v%d, 4, v%d" % (VB, VB))
    A("v_lshl_add_u32 v%d, v%d, 7, v%d" % (VB, VRP, VB))
    A("v_xor_b32 v%d, 64, v%d" % (VB + 1, VB))
    RD = 212
    A("ds_read_b128 v[%d:%d], v%d offset:%d" % (RD, RD + 3, VB, LDS_T))
    A("ds_read_b128 v[%d:%d], v%d offset:%d" % (RD + 4, RD + 7, VB + 1, LDS_T + 4096))
    SR_KVT = 12
    srd(A, SR_KVT, P_WS, 0x200000, WS_KVT)
    VG = 220
    A("v_lshlrev_b32 v%d, 12, v%d" % (VG, VRP))
    A("v_lshl_add_u32 v%d, v%d, 4, v%d" % (VG, VCG, VG))
    A("s_lshl_b32 s54, s%d, 18" % S_XCD)
    A("s_lshl_b32 s55, s%d, 7" % S_J)
    A("s_sub_u32 s55, 3968, s55")
    A("s_add_u32 s54, s54, s55")
    A("s_add_u32 s55, s54, 0x20000")
    A("s_waitcnt lgkmcnt(0)")
    A("buffer_store_dwordx4 v[%d:%d], v%d, s[%d:%d], s54 offen %s" % (RD, RD + 3, VG, SR_KVT, SR_KVT + 3, sc))
    A("buffer_store_dwordx4 v[%d:%d], v%d, s[%d:%d], s55 offen %s" % (RD + 4, RD + 7, VG, SR_KVT, SR_KVT + 3, sc))

def build_multi():
    A = Asm()
    hdr = ["; generated by gen.py (multi-kernel)",
           "; @launch kernel=k1_prep_kernel grid=(256,1,1) block=(256,1,1) lds=8192",
           '.amdgcn_target "amdgcn-amd-amdhsa--gfx950"', ".text"]
    prologue(A, "k1_prep_kernel"); phase_prep(A); epilogue(A, "k1_prep_kernel")
    lines, added, probs = pad_hazards(A.lines)
    desc = ['.section .rodata,"a"', ".p2align 6", kdesc("k1_prep_kernel", 224)]
    return "\n".join(hdr + lines + desc) + "\n"

if __name__ == "__main__":
    out = sys.argv[1] if len(sys.argv) > 1 else "k.s"
    open(out, "w").write(build_multi())
    print("wrote", out)
```

```python
from asmlib import *
from gen import *

XR = 0
WR = 49152
TOEP = 86016
UB = TOEP + 33280
LDS_END2 = UB + 9216
CS = 4160

def toeplitz_load(A, V):
    A("s_lshl_b32 s48, s%d, 6" % S_XCD)
    A("s_lshl_b32 s49, s%d, 1" % S_J)
    A("s_add_u32 s58, s48, s49")
    A("s_lshl_b32 s48, s58, 12")
    for ch in range(2):
        d = 8 + 4 * ch
        A("s_add_u32 s%d, s%d, s48" % (d, P_SSMK))
        A("s_addc_u32 s%d, s%d, 0" % (d + 1, P_SSMK + 1))
        if ch == 1:
            A("s_add_u32 s%d, s%d, 4096" % (d, d))
            A("s_addc_u32 s%d, s%d, 0" % (d + 1, d + 1))
        A("s_mov_b32 s%d, 4096" % (d + 2))
        A("s_mov_b32 s%d, 0x20000" % (d + 3))
    A("v_lshlrev_b32 v%d, 4, v0" % V)
    for ch in range(2):
        d = 8 + 4 * ch; b = V + 2 + 10 * ch
        A("buffer_load_dwordx4 v[%d:%d], v%d, s[%d:%d], 0 offen" % (b, b + 3, V, d, d + 3))
        A("buffer_load_dwordx4 v[%d:%d], v%d, s[%d:%d], 0 offen offset:4" % (b + 4, b + 7, V, d, d + 3))
        A("buffer_load_dword v%d, v%d, s[%d:%d], 0 offen offset:20" % (b + 8, V, d, d + 3))

def toeplitz_store(A, V):
    T = V + 22
    A("v_add_u32 v%d, %d, v%d" % (V + 1, TOEP + 32, V))
    for ch in range(2):
        b = V + 2 + 10 * ch; L0, L1, L2 = b, b + 4, b + 8
        o = ch * 16640
        for i in range(4):
            A("v_alignbyte_b32 v%d, v%d, v%d, 2" % (T + i, L1 + i, L0 + i))
        for i in range(3):
            A("v_alignbyte_b32 v%d, v%d, v%d, 2" % (T + 4 + i, L1 + i + 1, L1 + i))
        A("v_alignbyte_b32 v%d, v%d, v%d, 2" % (T + 7, L2, L1 + 3))
        A("ds_write_b128 v%d, v[%d:%d] offset:%d" % (V + 1, L0, L0 + 3, o))
        A("ds_write_b128 v%d, v[%d:%d] offset:%d" % (V + 1, T, T + 3, o + CS))
        A("ds_write_b128 v%d, v[%d:%d] offset:%d" % (V + 1, L1, L1 + 3, o + 2 * CS))
        A("ds_write_b128 v%d, v[%d:%d] offset:%d" % (V + 1, T + 4, T + 7, o + 3 * CS))
    A("s_cmp_lg_u32 s%d, 0" % S_WV)
    A("s_cbranch_scc1 L_toep_done")
    Z = T + 8
    for i in range(4): A("v_mov_b32 v%d, 0" % (Z + i))
    A("v_lshrrev_b32 v%d, 3, v1" % T)
    A("v_mul_u32_u24 v%d, 16640, v%d" % (T, T))
    A("v_bfe_u32 v%d, v1, 1, 2" % (T + 1))
    A("v_mul_u32_u24 v%d, %d, v%d" % (T + 1, CS, T + 1))
    A("v_add_u32 v%d, v%d, v%d" % (T, T, T + 1))
    A("v_and_b32 v%d, 1, v1" % (T + 1))
    A("v_lshl_add_u32 v%d, v%d, 4, v%d" % (T, T + 1, T))
    A("v_add_u32 v%d, %d, v%d" % (T, TOEP, T))
    A("s_mov_b64 exec, 0xffff")
    A("ds_write_b128 v%d, v[%d:%d]" % (T, Z, Z + 3))
    A("s_mov_b64 exec, 1")
    A("v_mov_b32 v%d, %d" % (T + 2, TOEP))
    for ch in range(2):
        b = V + 2 + 10 * ch; L0 = b; o = ch * 16640
        A("v_alignbyte_b32 v%d, v%d, v%d, 2" % (T + 3, L0, Z))
        A("v_alignbyte_b32 v%d, v%d, v%d, 2" % (T + 4, L0 + 1, L0))
        A("ds_write_b32 v%d, v%d offset:%d" % (T + 2, L0, o + 2 * CS + 28))
        A("ds_write_b32 v%d, v%d offset:%d" % (T + 2, T + 3, o + CS + 28))
        A("ds_write_b32 v%d, v%d offset:%d" % (T + 2, T + 3, o + 3 * CS + 24))
        A("ds_write_b32 v%d, v%d offset:%d" % (T + 2, T + 4, o + 3 * CS + 28))
    A("s_mov_b64 exec, -1")
    A.label("L_toep_done")

def u_load(A, V, sc=""):
    A("s_lshl_b32 s48, s58, 12")
    A("s_add_u32 s8, s%d, s48" % P_WS)
    A("s_addc_u32 s9, s%d, 0" % (P_WS + 1))
    A("s_add_u32 s8, s8, 0x%x" % WS_KVT)
    A("s_addc_u32 s9, s9, 0")
    A("s_mov_b32 s10, 8192")
    A("s_mov_b32 s11, 0x20000")
    A("v_lshlrev_b32 v%d, 4, v0" % V)
    A("s_movk_i32 s48, 4096")
    A("buffer_load_dwordx4 v[%d:%d], v%d, s[8:11], 0 offen %s" % (V + 2, V + 5, V, sc))
    A("buffer_load_dwordx4 v[%d:%d], v%d, s[8:11], s48 offen %s" % (V + 6, V + 9, V, sc))

def u_store(A, V):
    A("v_add_u32 v%d, %d, v%d" % (V + 1, UB, V))
    A("ds_write_b128 v%d, v[%d:%d]" % (V + 1, V + 2, V + 5))
    A("ds_write_b128 v%d, v[%d:%d] offset:4608" % (V + 1, V + 6, V + 9))
    A("s_cmp_lg_u32 s%d, 0" % S_WV)
    A("s_cbranch_scc1 L_upad_done")
    Z = V + 10
    for i in range(4): A("v_mov_b32 v%d, 0" % (Z + i))
    A("v_lshrrev_b32 v%d, 5, v1" % (V + 14))
    A("v_mul_u32_u24 v%d, 4608, v%d" % (V + 14, V + 14))
    A("v_and_b32 v%d, 31, v1" % (V + 15))
    A("v_lshl_add_u32 v%d, v%d, 4, v%d" % (V + 14, V + 15, V + 14))
    A("v_add_u32 v%d, %d, v%d" % (V + 14, UB + 4096, V + 14))
    A("ds_write_b128 v%d, v[%d:%d]" % (V + 14, Z, Z + 3))
    A.label("L_upad_done")

G1_ACC = 128
G1_SET = [64, 96]
G1_XA = 176
G1_WA = 180
G1_XE, G1_XO = 181, 182
G1_WM = 183

def gemm1_setup(A, sc_x=""):
    srd(A, 16, P_WS, 0x200000, WS_XN)
    srd(A, 20, P_W1, 512 * 1376 * 2)
    A("s_mul_i32 s59, s%d, 3" % S_MEM)
    A("s_lshl_b32 s48, s%d, 1" % S_MEM)
    A("s_add_u32 s48, s48, 11")
    A("s_cmp_lt_u32 s%d, 11" % S_MEM)
    A("s_cselect_b32 s59, s59, s48")
    T = 190
    A("v_lshrrev_b32 v%d, 3, v1" % T)
    A("v_and_b32 v%d, 7, v1" % (T + 1))
    A("v_lshrrev_b32 v%d, 1, v%d" % (T + 2, T))
    A("v_xor_b32 v%d, v%d, v%d" % (T + 1, T + 1, T + 2))
    A("s_lshl_b32 s48, s%d, 7" % S_CL)
    A("s_lshl_b32 s49, s%d, 5" % S_WV)
    A("s_add_u32 s48, s48, s49")
    A("v_lshlrev_b32 v%d, 2, v%d" % (T, T))
    A("v_add_u32 v%d, s48, v%d" % (T, T))
    A("v_lshlrev_b32 v%d, 10, v%d" % (T, T))
    A("v_lshl_add_u32 v%d, v%d, 4, v%d" % (G1_XE, T + 1, T))
    A("v_xor_b32 v%d, 64, v%d" % (G1_XO, G1_XE))
    A("s_mul_i32 s48, s%d, 192" % S_WV)
    A("s_lshl_b32 s49, s59, 6")
    A("s_mov_b32 s50, 43691")
    for m in range(3):
        A("v_add_u32 v%d, s48, v1" % T)
        if m: A("v_add_u32 v%d, %d, v%d" % (T, 64 * m, T))
        A("v_mul_lo_u32 v%d, v%d, s50" % (T + 1, T))
        A("v_lshrrev_b32 v%d, 19, v%d" % (T + 1, T + 1))
        A("v_mul_u32_u24 v%d, 12, v%d" % (T + 2, T + 1))
        A("v_sub_u32 v%d, v%d, v%d" % (T + 2, T, T + 2))
        A("v_mul_u32_u24 v%d, 2752, v%d" % (T + 1, T + 1))
        A("v_lshl_add_u32 v%d, v%d, 4, v%d" % (T + 1, T + 2, T + 1))
        A("v_add_u32 v%d, s49, v%d" % (T + 1, T + 1))
        if m: A("v_subrev_u32 v%d, %d, v%d" % (G1_WM + m, 1024 * m, T + 1))
        else: A("v_mov_b32 v%d, v%d" % (G1_WM, T + 1))
    A("v_and_b32 v%d, 31, v1" % T)
    A("v_lshrrev_b32 v%d, 5, v1" % (T + 1))
    A("v_bfe_u32 v%d, v1, 1, 3" % (T + 2))
    A("v_xor_b32 v%d, v%d, v%d" % (T + 2, T + 2, T + 1))
    A("s_lshl_b32 s48, s%d, 12" % S_WV)
    A("v_lshlrev_b32 v%d, 7, v%d" % (T, T))
    A("v_add_u32 v%d, s48, v%d" % (T, T))
    for ks in range(4):
        A("v_xor_b32 v%d, %d, v%d" % (T + 3, 2 * ks, T + 2))
        A("v_lshl_add_u32 v%d, v%d, 4, v%d" % (G1_XA + ks, T + 3, T))
    A("v_bfe_u32 v%d, v1, 2, 2" % T)
    A("v_lshl_add_u32 v%d, v%d, 3, v%d" % (T, T + 1, T))
    A("v_mul_u32_u24 v%d, 192, v%d" % (T, T))
    A("v_bfe_u32 v%d, v1, 4, 1" % (T + 2))
    A("v_lshl_add_u32 v%d, v%d, 5, v%d" % (T, T + 2, T))
    A("v_and_b32 v%d, 3, v1" % (T + 2))
    A("v_lshl_add_u32 v%d, v%d, 3, v%d" % (T, T + 2, T))
    A("v_add_u32 v%d, %d, v%d" % (G1_WA, WR, T))

def gemm1_dma(A, sc_x=""):
    A("s_lshl_b32 s48, s%d, 12" % S_WV)
    A("s_add_u32 s48, s48, s61")
    A("s_mov_b32 m0, s48")
    A("s_lshl_b32 s49, s60, 7")
    for i in range(4):
        A("buffer_load_dwordx4 v%d, s[16:19], s49 offen offset:%d %s lds" % (G1_XE if i % 2 == 0 else G1_XO, 1024 * i, sc_x))
    A("s_mul_i32 s48, s%d, 3072" % S_WV)
    A("s_add_u32 s48, s48, s62")
    A("s_add_u32 s48, s48, %d" % WR)
    A("s_mov_b32 m0, s48")
    A("s_mul_i32 s49, s60, 176128")
    for m in range(3):
        A("buffer_load_dwordx4 v%d, s[20:23], s49 offen offset:%d lds" % (G1_WM + m, 1024 * m))

def gemm1_adv(A):
    A("s_add_u32 s60, s60, 1")
    A("s_add_u32 s61, s61, 16384")
    A("s_add_u32 s62, s62, 12288")
    A("s_cmp_eq_u32 s61, 49152")
    A("s_cselect_b32 s61, 0, s61")
    A("s_cselect_b32 s62, 0, s62")

def gemm1_reads(A, setb, ks0):
    for kk in range(2):
        ks = ks0 + kk; b = setb + 16 * kk
        A("ds_read_b128 v[%d:%d], v%d" % (b + 12, b + 15, G1_XA + ks))
        for f in range(3):
            for h in range(2):
                A("ds_read_b64_tr_b16 v[%d:%d], v%d offset:%d" % (b + 4 * f + 2 * h, b + 4 * f + 2 * h + 1, G1_WA, 3072 * ks + 768 * h + 64 * f))

def gemm1_mfma(A, setb):
    for kk in range(2):
        b = setb + 16 * kk
        for f in range(3):
            A("v_mfma_f32_32x32x16_bf16 v[%d:%d], v[%d:%d], v[%d:%d], v[%d:%d]" % (
                G1_ACC + 16 * f, G1_ACC + 16 * f + 15, b + 4 * f, b + 4 * f + 3, b + 12, b + 15, G1_ACC + 16 * f, G1_ACC + 16 * f + 15))

def gemm1_rdadv(A):
    A("s_add_u32 s63, s63, 1")
    A("s_cmp_eq_u32 s63, 3")
    A("s_cselect_b32 s63, 0, s63")
    A("s_movk_i32 s48, 16384")
    A("s_movk_i32 s49, 12288")
    A("s_cselect_b32 s48, -32768, s48")
    A("s_cselect_b32 s49, -24576, s49")
    for ks in range(4):
        A("v_add_u32 v%d, s48, v%d" % (G1_XA + ks, G1_XA + ks))
    A("v_add_u32 v%d, s49, v%d" % (G1_WA, G1_WA))

def phase_gemm1(A, sc_x="", sc_h=""):
    gemm1_setup(A)
    A("s_mov_b32 s60, 0"); A("s_mov_b32 s61, 0"); A("s_mov_b32 s62, 0"); A("s_mov_b32 s63, 0")
    for st in range(3):
        gemm1_dma(A, sc_x); gemm1_adv(A)
    for i in range(48): A("v_mov_b32 v%d, 0" % (G1_ACC + i))
    A("s_waitcnt vmcnt(14)")
    A("s_barrier")
    gemm1_reads(A, G1_SET[0], 0)
    A("s_mov_b32 s64, 0")
    A.label("L_g1_loop")
    A("s_waitcnt lgkmcnt(0)")
    gemm1_reads(A, G1_SET[1], 2)
    gemm1_mfma(A, G1_SET[0])
    A("s_cmp_ge_u32 s64, 6")
    A("s_cbranch_scc1 L_g1_w0")
    A("s_waitcnt vmcnt(7) lgkmcnt(0)")
    A("s_branch L_g1_w1")
    A.label("L_g1_w0")
    A("s_waitcnt vmcnt(0) lgkmcnt(0)")
    A.label("L_g1_w1")
    A("s_barrier")
    A("s_cmp_ge_u32 s60, 8")
    A("s_cbranch_scc1 L_g1_nodma")
    gemm1_dma(A, sc_x); gemm1_adv(A)
    A.label("L_g1_nodma")
    gemm1_rdadv(A)
    A("s_cmp_ge_u32 s64, 7")
    A("s_cbranch_scc1 L_g1_noread")
    gemm1_reads(A, G1_SET[0], 0)
    A.label("L_g1_noread")
    gemm1_mfma(A, G1_SET[1])
    A("s_add_u32 s64, s64, 1")
    A("s_cmp_lt_u32 s64, 8")
    A("s_cbranch_scc1 L_g1_loop")
    srd(A, 16, P_WS, 64 * 86 * 1024, WS_H)
    A("s_lshl_b32 s48, s%d, 2" % S_CL)
    A("s_add_u32 s48, s48, s%d" % S_WV)
    A("s_mul_i32 s48, s48, 86")
    A("s_lshl_b32 s49, s59, 1")
    A("s_add_u32 s48, s48, s49")
    A("s_lshl_b32 s48, s48, 10")
    A("s_add_u32 s49, s48, 4096")
    VA = 190; PK = 64
    A("v_lshlrev_b32 v%d, 4, v1" % VA)
    A("s_nop 7")
    for f in range(3):
        if f == 2:
            A("s_cmp_ge_u32 s%d, 11" % S_MEM)
            A("s_cbranch_scc1 L_g1_skip3")
        for i in range(8):
            A("v_cvt_pk_bf16_f32 v%d, v%d, v%d" % (PK + 8 * f + i, G1_ACC + 16 * f + 2 * i, G1_ACC + 16 * f + 2 * i + 1))
        for i in range(8):
            A("v_pk_max_i16 v%d, v%d, 0" % (PK + 8 * f + i, PK + 8 * f + i))
        for h in range(2):
            off = f * 2048 + h * 1024
            so = "s48" if off < 4096 else "s49"
            A("buffer_store_dwordx4 v[%d:%d], v%d, s[16:19], %s offen offset:%d %s" % (PK + 8 * f + 4 * h, PK + 8 * f + 4 * h + 3, VA, so, off % 4096, sc_h))
    A.label("L_g1_skip3")

CV_ACC = 32; CV_SET = [64, 128]; CV_AA = 192; CV_BA = 193

def conv_reads(A, setb, r):
    def rdB(d): A("ds_read_b128 v[%d:%d], v%d offset:%d" % (setb + 32 + 4 * d, setb + 32 + 4 * d + 3, CV_BA, 512 * (7 - d) + 64 * r))
    def rdA(t):
        A("ds_read_b64 v[%d:%d], v%d offset:%d" % (setb + 4 * t, setb + 4 * t + 1, CV_AA, 512 * t + 64 * r))
        A("ds_read_b64 v[%d:%d], v%d offset:%d" % (setb + 4 * t + 2, setb + 4 * t + 3, CV_AA, 512 * t + 64 * r + 8))
    L = [lambda: rdB(0)] + [(lambda t=t: rdA(t)) for t in range(8)] + [(lambda d=d: rdB(d)) for d in range(1, 8)]
    return L

def conv_mfmas(setb):
    L = []
    for d in range(8):
        for j in range(d, 8):
            t = j - d
            L.append("v_mfma_f32_16x16x32_bf16 v[%d:%d], v[%d:%d], v[%d:%d], v[%d:%d]" % (
                CV_ACC + 4 * j, CV_ACC + 4 * j + 3, setb + 4 * t, setb + 4 * t + 3, setb + 32 + 4 * d, setb + 32 + 4 * d + 3, CV_ACC + 4 * j, CV_ACC + 4 * j + 3))
    return L

def phase_conv(A, sc_y=""):
    T = 194
    A("s_lshr_b32 s48, s%d, 1" % S_WV)
    A("s_and_b32 s49, s%d, 1" % S_WV)
    A("v_and_b32 v%d, 15, v1" % T)
    A("v_lshrrev_b32 v%d, 4, v1" % (T + 1))
    A("v_add_u32 v%d, 1, v%d" % (T + 2, T))
    A("v_and_b32 v%d, 3, v%d" % (T + 3, T + 2))
    A("v_mul_u32_u24 v%d, %d, v%d" % (T + 3, CS, T + 3))
    A("v_lshrrev_b32 v%d, 2, v%d" % (T + 2, T + 2))
    A("v_lshl_add_u32 v%d, v%d, 3, v%d" % (T + 3, T + 2, T + 3))
    A("v_lshl_add_u32 v%d, v%d, 4, v%d" % (T + 3, T + 1, T + 3))
    A("s_mul_i32 s50, s48, 16640")
    A("s_lshl_b32 s51, s49, 8")
    A("s_add_u32 s50, s50, s51")
    A("s_add_u32 s50, s50, %d" % TOEP)
    A("v_add_u32 v%d, s50, v%d" % (CV_AA, T + 3))
    A("s_mul_i32 s50, s48, 4608")
    A("s_add_u32 s50, s50, s51")
    A("s_add_u32 s50, s50, %d" % (UB + 480))
    A("v_lshlrev_b32 v%d, 5, v%d" % (T + 2, T))
    A("v_sub_u32 v%d, s50, v%d" % (T + 2, T + 2))
    A("v_lshl_add_u32 v%d, v%d, 4, v%d" % (CV_BA, T + 1, T + 2))
    for i in range(32): A("v_mov_b32 v%d, 0" % (CV_ACC + i))
    for f in conv_reads(A, CV_SET[0], 0): f()
    for r in range(4):
        A("s_waitcnt lgkmcnt(0)")
        mf = conv_mfmas(CV_SET[r & 1])
        rd = conv_reads(A, CV_SET[(r + 1) & 1], r + 1) if r < 3 else []
        k = 0
        for i, m in enumerate(mf):
            A(m)
            if i % 2 == 0 and k < len(rd):
                rd[k](); k += 1
        while k < len(rd): rd[k](); k += 1
    A("s_barrier")
    A("s_lshl_b32 s50, s%d, 13" % S_WV)
    A("v_lshlrev_b32 v%d, 4, v1" % T)
    A("v_add_u32 v%d, s50, v%d" % (T + 4, T))
    A("s_nop 4")
    for j in range(8):
        A("ds_write_b128 v%d, v[%d:%d] offset:%d" % (T + 4, CV_ACC + 4 * j, CV_ACC + 4 * j + 3, 1024 * j))
    A("s_lshl_b32 s50, s58, 1")
    A("s_add_u32 s52, s%d, s50" % P_D)
    A("s_addc_u32 s53, s%d, 0" % (P_D + 1))
    A("s_load_dword s54, s[52:53], 0")
    A("s_waitcnt lgkmcnt(0)")
    A("s_barrier")
    A("s_lshl_b32 s55, s54, 16")
    A("s_and_b32 s54, s54, 0xffff0000")
    A("s_lshl_b32 s50, s%d, 11" % S_WV)
    A("v_add_u32 v%d, s50, v%d" % (T + 4, T))
    R = 64
    for jj in range(2):
        for w in range(4):
            b = R + 16 * jj + 4 * w
            A("ds_read_b128 v[%d:%d], v%d offset:%d" % (b, b + 3, T + 4, 8192 * w + 1024 * jj))
    A("v_and_b32 v%d, 15, v1" % (T + 5))
    A("v_lshrrev_b32 v%d, 4, v1" % (T + 6))
    A("v_lshlrev_b32 v%d, 5, v%d" % (T + 5, T + 5))
    A("v_lshl_add_u32 v%d, v%d, 3, v%d" % (T + 5, T + 6, T + 5))
    A("s_lshl_b32 s50, s%d, 10" % S_WV)
    A("s_sub_u32 s50, %d, s50" % (UB + 4088 - 512))
    A("v_sub_u32 v%d, s50, v%d" % (T + 5, T + 5))
    UU = 96
    for jj in range(2):
        for ch in range(2):
            b = UU + 4 * jj + 2 * ch
            A("ds_read_b64 v[%d:%d], v%d offset:%d" % (b, b + 1, T + 5, ch * 4608 + (512 if jj == 0 else 0)))
    A("s_waitcnt lgkmcnt(0)")
    UF = 104; O = 120
    for jj in range(2):
        for ch in range(2):
            b = R + 16 * jj + 8 * ch
            for i in range(4):
                A("v_add_f32 v%d, v%d, v%d" % (b + i, b + i, b + 4 + i))
            ub = UU + 4 * jj + 2 * ch
            A("v_and_b32 v%d, 0xffff0000, v%d" % (UF + 0, ub + 1))
            A("v_lshlrev_b32 v%d, 16, v%d" % (UF + 1, ub + 1))
            A("v_and_b32 v%d, 0xffff0000, v%d" % (UF + 2, ub))
            A("v_lshlrev_b32 v%d, 16, v%d" % (UF + 3, ub))
            for i in range(4):
                A("v_fmac_f32 v%d, s%d, v%d" % (b + i, 55 if ch == 0 else 54, UF + i))
        for i in range(4):
            A("v_cvt_pk_bf16_f32 v%d, v%d, v%d" % (O + 4 * jj + i, R + 16 * jj + i, R + 16 * jj + 8 + i))
    srd(A, 16, P_WS, 0x200000, WS_Y2)
    A("s_lshl_b32 s50, s58, 12")
    A("s_lshl_b32 s51, s%d, 11" % S_WV)
    A("s_add_u32 s50, s50, s51")
    A("v_and_b32 v%d, 15, v1" % (T + 5))
    A("v_lshrrev_b32 v%d, 4, v1" % (T + 6))
    A("v_lshlrev_b32 v%d, 6, v%d" % (T + 5, T + 5))
    A("v_lshl_add_u32 v%d, v%d, 4, v%d" % (T + 5, T + 6, T + 5))
    A("buffer_store_dwordx4 v[%d:%d], v%d, s[16:19], s50 offen %s" % (O, O + 3, T + 5, sc_y))
    A("buffer_store_dwordx4 v[%d:%d], v%d, s[16:19], s50 offen offset:1024 %s" % (O + 4, O + 7, T + 5, sc_y))

def k2(A):
    toeplitz_load(A, 2)
    A("s_waitcnt vmcnt(0)")
    toeplitz_store(A, 2)
    u_load(A, 48)
    A("s_waitcnt vmcnt(0)")
    u_store(A, 48)
    phase_gemm1(A)
    A("s_waitcnt lgkmcnt(0)")
    A("s_barrier")
    phase_conv(A)
```

```python
from asmlib import *
from gen import *

W2S = 0
RED = 0
YB = 90112
LDS_END3 = YB + 8704
H_V = 64
W_A = 0
ACC2 = 176

def g2_ids(A):
    A("s_and_b32 s65, s%d, 1" % S_MEM)
    A("s_lshl_b32 s48, s%d, 1" % S_CL)
    A("s_add_u32 s65, s65, s48")
    A("s_lshr_b32 s66, s%d, 1" % S_MEM)
    A("s_mul_i32 s67, s%d, 22" % S_WV)

def g2_w_setup(A):
    srd(A, 20, P_W2, 1376 * 512 * 2)
    T = 8
    A("v_lshrrev_b32 v%d, 3, v1" % T)
    A("v_lshlrev_b32 v%d, 11, v%d" % (T, T))
    A("v_and_b32 v%d, 7, v1" % (T + 1))
    A("v_lshl_add_u32 v%d, v%d, 4, v%d" % (T, T + 1, T))
    A("s_lshl_b32 s48, s66, 7")
    A("v_add_u32 v2, s48, v%d" % T)
    A("v_xor_b32 v3, 64, v2")
    A("v_bfe_u32 v%d, v1, 2, 1" % T)
    A("v_lshlrev_b32 v%d, 10, v%d" % (T + 1, T))
    A("v_lshrrev_b32 v%d, 5, v1" % (T + 2))
    A("v_lshl_add_u32 v%d, v%d, 8, v%d" % (T + 1, T + 2, T + 1))
    A("v_bfe_u32 v%d, v1, 3, 1" % (T + 2))
    A("v_lshl_add_u32 v%d, v%d, 7, v%d" % (T + 1, T + 2, T + 1))
    A("v_bfe_u32 v%d, v1, 4, 1" % (T + 2))
    A("v_lshlrev_b32 v%d, 1, v%d" % (T + 2, T + 2))
    A("v_bfe_u32 v%d, v1, 1, 1" % (T + 3))
    A("v_add_u32 v%d, v%d, v%d" % (T + 2, T + 2, T + 3))
    A("v_lshl_add_u32 v%d, v%d, 2, v%d" % (T + 2, T, T + 2))
    A("v_lshl_add_u32 v%d, v%d, 4, v%d" % (T + 1, T + 2, T + 1))
    A("v_and_b32 v%d, 1, v1" % (T + 2))
    A("v_lshl_add_u32 v%d, v%d, 3, v%d" % (T + 1, T + 2, T + 1))
    A("s_mul_i32 s48, s%d, %d" % (S_WV, 11 * 2048))
    A("v_add_u32 v4, s48, v%d" % (T + 1))
    A("v_xor_b32 v5, 64, v4")

def g2_w_round(A, rnd):
    A("s_mul_i32 s48, s%d, %d" % (S_WV, 11 * 2048))
    A("s_add_u32 s49, s67, %d" % (11 * rnd))
    A("s_lshl_b32 s49, s49, 14")
    for k in range(11):
        A("s_mov_b32 m0, s48")
        A("s_nop 0")
        A("buffer_load_dwordx4 v2, s[20:23], s49 offen lds")
        A("buffer_load_dwordx4 v3, s[20:23], s49 offen offset:1024 lds")
        if k < 10:
            A("s_add_u32 s48, s48, 2048")
            A("s_add_u32 s49, s49, 16384")
    A("s_waitcnt vmcnt(0)")
    for k in range(11):
        ul = 11 * rnd + k
        for dt in range(2):
            for h in range(2):
                b = W_A + 8 * ul + 4 * dt + 2 * h
                A("ds_read_b64_tr_b16 a[%d:%d], v%d offset:%d" % (b, b + 1, 4 + dt, 2048 * k + 512 * h))
    A("s_waitcnt lgkmcnt(0)")

def g2_h_loads(A, sc=""):
    srd(A, 16, P_WS, 64 * 86 * 1024, WS_H)
    A("v_lshlrev_b32 v6, 4, v1")
    A("s_lshl_b32 s48, s65, 1")
    A("s_mul_i32 s48, s48, 86")
    A("s_add_u32 s48, s48, s67")
    A("s_lshl_b32 s48, s48, 10")
    A("s_add_u32 s49, s48, %d" % (86 * 1024))
    for ul in range(22):
        if ul == 20:
            A("s_cmp_eq_u32 s%d, 3" % S_WV)
            A("s_cbranch_scc1 L_g2_hl_done")
        for tt in range(2):
            b = H_V + 8 * ul + 4 * tt
            A("buffer_load_dwordx4 v[%d:%d], v6, s[16:19], s%d offen offset:%d %s" % (b, b + 3, 48 + tt, 1024 * (ul & 3), sc))
        if ul & 3 == 3:
            A("s_add_u32 s48, s48, 4096"); A("s_add_u32 s49, s49, 4096")
    A.label("L_g2_hl_done")

def g2_mfma(A, counted=True):
    for i in range(64): A("v_accvgpr_write_b32 a%d, 0" % (ACC2 + i))
    for ul in range(22):
        if ul == 20:
            A("s_cmp_eq_u32 s%d, 3" % S_WV)
            A("s_cbranch_scc1 L_g2_mm_done")
        n = max(0, 2 * (19 - ul))
        A("s_waitcnt vmcnt(%d)" % n)
        for dt in range(2):
            for tt in range(2):
                ac = ACC2 + 16 * (2 * dt + tt); w = W_A + 8 * ul + 4 * dt; h = H_V + 8 * ul + 4 * tt
                A("v_mfma_f32_32x32x16_bf16 a[%d:%d], a[%d:%d], v[%d:%d], a[%d:%d]" % (ac, ac + 15, w, w + 3, h, h + 3, ac, ac + 15))
    A.label("L_g2_mm_done")

def g2_final(A, sc=""):
    T = 8
    srd(A, 8, P_WS, 0x200000, WS_Y2)
    srd(A, 12, P_Q, 0x200000)
    srd(A, 16, P_WS, 0x200000, WS_XN)
    srd(A, 20, P_OUT, 0x200000)
    A("v_lshrrev_b32 v%d, 4, v0" % T)
    A("v_and_b32 v%d, 15, v0" % (T + 1))
    A("v_lshlrev_b32 v%d, 13, v%d" % (T + 2, T))
    A("v_lshl_add_u32 v%d, v%d, 4, v%d" % (T + 2, T + 1, T + 2))
    A("s_lshl_b32 s48, s66, 18")
    A("s_lshl_b32 s49, s65, 8")
    A("s_add_u32 s48, s48, s49")
    A("s_add_u32 s49, s48, 0x20000")
    YR = 16
    A("buffer_load_dwordx4 v[%d:%d], v%d, s[8:11], s48 offen %s" % (YR, YR + 3, T + 2, sc))
    A("buffer_load_dwordx4 v[%d:%d], v%d, s[8:11], s49 offen %s" % (YR + 4, YR + 7, T + 2, sc))
    A("v_mul_u32_u24 v%d, 272, v%d" % (T + 3, T))
    A("v_lshl_add_u32 v%d, v%d, 4, v%d" % (T + 3, T + 1, T + 3))
    A("v_add_u32 v%d, %d, v%d" % (T + 3, YB, T + 3))
    A("v_lshrrev_b32 v%d, 3, v0" % (T + 4))
    A("v_and_b32 v%d, 7, v%d" % (T + 5, T + 4))
    A("v_lshlrev_b32 v%d, 2, v%d" % (T + 5, T + 5))
    A("v_lshrrev_b32 v%d, 3, v%d" % (T + 6, T + 4))
    A("v_add_u32 v%d, v%d, v%d" % (T + 5, T + 5, T + 6))
    A("v_and_b32 v%d, 7, v0" % (T + 6))
    A("v_lshlrev_b32 v7, 10, v%d" % (T + 5))
    A("v_lshl_add_u32 v7, v%d, 4, v7" % (T + 6))
    A("s_lshl_b32 s50, s65, 16")
    A("s_lshl_b32 s51, s66, 7")
    A("s_add_u32 s50, s50, s51")
    A("s_add_u32 s51, s50, 0x8000")
    XR_, XNR = 24, 32
    A("buffer_load_dwordx4 v[%d:%d], v7, s[12:15], s50 offen" % (XR_, XR_ + 3))
    A("buffer_load_dwordx4 v[%d:%d], v7, s[12:15], s51 offen" % (XR_ + 4, XR_ + 7))
    A("buffer_load_dwordx4 v[%d:%d], v7, s[16:19], s50 offen %s" % (XNR, XNR + 3, sc))
    A("buffer_load_dwordx4 v[%d:%d], v7, s[16:19], s51 offen %s" % (XNR + 4, XNR + 7, sc))
    A("s_barrier")
    A("v_and_b32 v40, 31, v1")
    A("v_mul_u32_u24 v40, 272, v40")
    A("v_lshrrev_b32 v41, 5, v1")
    A("v_lshl_add_u32 v40, v41, 4, v40")
    A("s_mul_i32 s48, s%d, 17408" % S_WV)
    A("v_add_u32 v40, s48, v40")
    A("s_nop 7")
    for dt in range(2):
        for tt in range(2):
            ac = ACC2 + 16 * (2 * dt + tt)
            for g in range(4):
                A("ds_write_b128 v40, a[%d:%d] offset:%d" % (ac + 4 * g, ac + 4 * g + 3, RED + tt * 32 * 272 + dt * 128 + g * 32))
    A("s_waitcnt vmcnt(4)")
    A("ds_write_b128 v%d, v[%d:%d]" % (T + 3, YR, YR + 3))
    A("ds_write_b128 v%d, v[%d:%d] offset:%d" % (T + 3, YR + 4, YR + 7, 16 * 272))
    A("s_waitcnt lgkmcnt(0)")
    A("s_barrier")
    A("v_mul_u32_u24 v41, 272, v%d" % (T + 4))
    A("v_lshl_add_u32 v41, v%d, 5, v41" % (T + 6))
    A("v_mul_u32_u24 v42, %d, v%d" % (4 * 272, T + 6))
    A("v_lshl_add_u32 v42, v%d, 2, v42" % (T + 5))
    A("v_add_u32 v42, %d, v42" % YB)
    P = 64
    YV = 44
    A("s_mov_b32 s52, 0xbfb8aa3b")
    for i in range(2):
        for w in range(4):
            for hlf in range(2):
                b = P + 32 * i + 8 * w + 4 * hlf
                A("ds_read_b128 v[%d:%d], v41 offset:%d" % (b, b + 3, RED + w * 17408 + i * 32 * 272 + 16 * hlf))
        for k in range(4):
            A("ds_read_b32 v%d, v42 offset:%d" % (YV + 4 * i + k, k * 272 + i * 128))
    A("s_waitcnt vmcnt(0) lgkmcnt(0)")
    E = 128; F = 136; G = 144; O = 152
    for i in range(2):
        b = P + 32 * i
        for e in range(8):
            A("v_add_f32 v%d, v%d, v%d" % (b + e, b + e, b + 8 + e))
            A("v_add_f32 v%d, v%d, v%d" % (b + 16 + e, b + 16 + e, b + 24 + e))
        for e in range(8):
            A("v_add_f32 v%d, v%d, v%d" % (b + e, b + e, b + 16 + e))
        for e in range(4):
            A("v_cvt_pk_bf16_f32 v%d, v%d, v%d" % (E + e, b + 2 * e, b + 2 * e + 1))
        unpack8(A, b, E)
        for e in range(8): A("v_mul_f32 v%d, s52, v%d" % (E + e, b + e))
        for e in range(8): A("v_exp_f32 v%d, v%d" % (E + e, E + e))
        for e in range(8): A("v_add_f32 v%d, 1.0, v%d" % (E + e, E + e))
        for e in range(8): A("v_rcp_f32 v%d, v%d" % (E + e, E + e))
        for e in range(8): A("v_mul_f32 v%d, v%d, v%d" % (b + e, b + e, E + e))
        unpack8(A, E, XNR + 4 * i)
        unpack8(A, F, YV + 4 * i)
        unpack8(A, G, XR_ + 4 * i)
        for e in range(8): A("v_mul_f32 v%d, v%d, v%d" % (E + e, E + e, F + e))
        for e in range(8): A("v_fmac_f32 v%d, v%d, v%d" % (G + e, E + e, b + e))
        for e in range(4):
            A("v_cvt_pk_bf16_f32 v%d, v%d, v%d" % (O + 4 * i + e, G + 2 * e, G + 2 * e + 1))
        A("buffer_store_dwordx4 v[%d:%d], v7, s[20:23], s%d offen" % (O + 4 * i, O + 4 * i + 3, 50 + i))

def k3(A):
    g2_ids(A)
    g2_w_setup(A)
    g2_w_round(A, 0)
    g2_w_round(A, 1)
    g2_h_loads(A)
    g2_mfma(A)
    g2_final(A)
```

```python
import sys
from asmlib import *
from gen import *
import gen2
def build_multi(which):
    A = Asm()
    hdr = ["; generated by genm.py (multi-kernel)"]
    desc = ['.section .rodata,"a"', ".p2align 6"]
    if 1 in which:
        hdr.append("; @launch kernel=k1_prep_kernel grid=(256,1,1) block=(256,1,1) lds=8192")
        prologue(A, "k1_prep_kernel"); phase_prep(A); epilogue(A, "k1_prep_kernel"); desc.append(kdesc("k1_prep_kernel", 224))
    if 2 in which:
        hdr.append("; @launch kernel=k2_kernel grid=(256,1,1) block=(256,1,1) lds=%d" % gen2.LDS_END2)
        prologue(A, "k2_kernel"); gen2.k2(A); epilogue(A, "k2_kernel"); desc.append(kdesc("k2_kernel", 224))
    if 3 in which:
        import gen3
        hdr.append("; @launch kernel=k3_kernel grid=(256,1,1) block=(256,1,1) lds=%d" % gen3.LDS_END3)
        prologue(A, "k3_kernel"); gen3.k3(A); epilogue(A, "k3_kernel"); desc.append(kdesc("k3_kernel", 256, 256))
    hdr += ['.amdgcn_target "amdgcn-amd-amdhsa--gfx950"', ".text"]
    lines, added, probs = pad_hazards(A.lines)
    return "\n".join(hdr + lines + desc) + "\n"
if __name__ == "__main__":
    out = sys.argv[1]; which = [int(c) for c in sys.argv[2]]
    open(out, "w").write(build_multi(which)); print("wrote", out)
```

```python
import sys
from asmlib import *

KN = "recurrent_scan__ssm_conv_h3__dense_activation_relu__prompt"
WS_ST = 0x000000; WS_KVT = 0x200000; WS_H = 0x400000; WS_Y2 = 0xA00000
WS_FLAG = 0xC00000; WS_PROF = 0xD00000; WS_W2F = 0xE00000
FL_P = 0x1000; FL_H = 0x9000; FL_Y = 0x11000

S_WV = 3; S_XCD = 4; S_J = 5; S_CL = 6; S_MEM = 7
P_Q, P_K, P_V, P_SK, P_SSMK, P_D, P_BX, P_W1 = 24, 26, 28, 30, 32, 34, 36, 38
P_W2, P_OUT, P_DBG, P_WS = 40, 42, 44, 46
S_CH0 = 58; S_UNIT0 = 59; S_NONCE = 60; S_E = 61; S_TB64 = 65; S_CB = 66; S_U0 = 67
S_ST = 68; S_XS = 69; S_WS_ = 70; S_RS = 71
S_IT = 64
S_ROT = 57
S_NU = 63
S_WPOS = 62
W2S = 49152

NSLOT = 4
XR = 0; WR = NSLOT * 16384
TOEP = NSLOT * 28672; CS = 4160
UB = TOEP + 33280
KVT_T = UB
CSB = UB + 9216
LDS_TOTAL = CSB + 512
STG = 0
CVX = 0; RED = 0; YB = 69632

class Cfg:
    prof = False; dbgstamps = False; touch = False; lprof = False; cyc = False
cfg = Cfg()
NST = [0]
def stamp(A):
    if not cfg.prof: return
    i = NST[0]; NST[0] += 1
    assert i < 12, "too many stamps"
    A("%s s[%d:%d]" % ("s_memtime" if cfg.cyc else "s_memrealtime", 72 + 2 * i, 73 + 2 * i))

def srd(A, d, ptr, nbytes, off=0):
    if off:
        A("s_add_u32 s%d, s%d, 0x%x" % (d, ptr, off)); A("s_addc_u32 s%d, s%d, 0" % (d + 1, ptr + 1))
    else:
        A("s_mov_b32 s%d, s%d" % (d, ptr)); A("s_mov_b32 s%d, s%d" % (d + 1, ptr + 1))
    A("s_mov_b32 s%d, 0x%x" % (d + 2, nbytes)); A("s_mov_b32 s%d, 0x20000" % (d + 3))

def unpack(A, dst, src, n):
    for i in range(n):
        A("v_lshlrev_b32 v%d, 16, v%d" % (dst + 2 * i, src + i))
        A("v_and_b32 v%d, 0xffff0000, v%d" % (dst + 2 * i + 1, src + i))

def bf16_round(A, dst, src):
    A("v_cvt_pk_bf16_f32 v%d, v%d, v%d" % (dst, src, src))
    A("v_and_b32 v%d, 0xffff0000, v%d" % (dst, dst))

def wave_reduce(A, vs, sdst):
    steps = ["row_shr:1 row_mask:0xf bank_mask:0xf bound_ctrl:0", "row_shr:2 row_mask:0xf bank_mask:0xf bound_ctrl:0",
             "row_shr:4 row_mask:0xf bank_mask:0xf bound_ctrl:0", "row_shr:8 row_mask:0xf bank_mask:0xf bound_ctrl:0",
             "row_bcast:15 row_mask:0xa bank_mask:0xf", "row_bcast:31 row_mask:0xc bank_mask:0xf"]
    for st in steps:
        for r in vs: A("v_add_f32_dpp v%d, v%d, v%d %s" % (r, r, r, st))
    for r, d in zip(vs, sdst): A("v_readlane_b32 s%d, v%d, 63" % (d, r))

class Sub(Asm):
    def ins(self): return [l.strip() for l in self.lines]

def weave(A, mf, fill, lead=0, per=None):
    fill = list(fill)
    for l in fill[:lead]: A(l)
    fill = fill[lead:]
    n = len(mf); k = 0
    for i, m in enumerate(mf):
        A(m)
        tgt = (len(fill) * (i + 1) + n - 1) // n if per is None else min(len(fill), per * (i + 1))
        while k < tgt: A(fill[k]); k += 1
    while k < len(fill): A(fill[k]); k += 1

SC = "sc0 sc1"; SCL = "sc1"
_lbl = [0]
def newlabel(p):
    _lbl[0] += 1
    return "L_%s_%d" % (p, _lbl[0])

def flag_store(A, fl_off):
    L = newlabel("pub")
    A("s_cmp_lg_u32 s%d, 0" % S_WV)
    A("s_cbranch_scc1 %s" % L)
    A("s_lshl_b32 s48, s%d, 5" % S_XCD)
    A("s_add_u32 s48, s48, s%d" % S_J)
    A("s_lshl_b32 s48, s48, 7")
    A("s_add_u32 s48, s48, 0x%x" % (WS_FLAG + fl_off))
    A("v_mov_b32 v2, s48")
    A("v_mov_b32 v3, s%d" % S_NONCE)
    A("s_mov_b64 exec, 1")
    A("global_store_dword v2, v3, s[%d:%d] %s" % (P_WS, P_WS + 1, SC))
    A("s_mov_b64 exec, -1")
    A.label(L)

def poll(A, fl_off, grp_sreg, nlanes, stride, first_sreg=None, va=2, vd=3):
    A("s_lshl_b32 s48, s%d, 5" % grp_sreg)
    if first_sreg is not None: A("s_add_u32 s48, s48, s%d" % first_sreg)
    A("v_mul_u32_u24 v%d, %d, v1" % (va, stride))
    A("v_add_u32 v%d, s48, v%d" % (va, va))
    A("v_lshlrev_b32 v%d, 7, v%d" % (va, va))
    A("v_add_u32 v%d, 0x%x, v%d" % (va, WS_FLAG + fl_off, va))
    A("s_mov_b64 exec, 0x%x" % ((1 << nlanes) - 1))
    A("s_mov_b32 s55, 0")
    L = newlabel("poll"); D = newlabel("polld")
    A.label(L)
    A("global_load_dword v%d, v%d, s[%d:%d] %s" % (vd, va, P_WS, P_WS + 1, SCL))
    A("s_waitcnt vmcnt(0)")
    A("v_cmp_ne_u32 vcc, s%d, v%d" % (S_NONCE, vd))
    A("s_add_u32 s55, s55, 1")
    A("s_cbranch_vccz %s" % D)
    A("s_cmp_gt_u32 s55, 200000")
    A("s_cbranch_scc1 %s" % D)
    A("s_sleep 1")
    A("s_branch %s" % L)
    A.label(D)
    A("s_mov_b64 exec, -1")

def prologue(A, name):
    A.raw(".globl %s" % name); A.raw(".p2align 8"); A.raw(".type %s,@function" % name)
    A.label(name)
    A("s_cmp_ge_u32 s2, 256")
    A("s_cbranch_scc1 L_end")
    A("s_load_dwordx16 s[24:39], s[0:1], 0")
    A("s_load_dwordx8 s[40:47], s[0:1], 64")
    stamp(A)
    if cfg.prof: A("s_memtime s[98:99]")
    A("v_lshrrev_b32 v1, 6, v0")
    A("s_and_b32 s%d, s2, 7" % S_XCD)
    A("s_lshr_b32 s%d, s2, 3" % S_J)
    A("v_readfirstlane_b32 s%d, v1" % S_WV)
    A("v_and_b32 v1, 63, v0")
    A("s_and_b32 s%d, s%d, 1" % (S_CL, S_J))
    A("s_lshl_b32 s48, s%d, 1" % S_XCD)
    A("s_add_u32 s%d, s%d, s48" % (S_CL, S_CL))
    A("s_lshr_b32 s%d, s%d, 1" % (S_MEM, S_J))
    A("s_lshl_b32 s48, s%d, 6" % S_XCD)
    A("s_lshl_b32 s49, s%d, 1" % S_J)
    A("s_add_u32 s%d, s48, s49" % S_CH0)
    A("s_mul_i32 s%d, s%d, 3" % (S_UNIT0, S_MEM))
    A("s_lshl_b32 s48, s%d, 1" % S_MEM)
    A("s_add_u32 s48, s48, 11")
    A("s_cmp_lt_u32 s%d, 11" % S_MEM)
    A("s_cselect_b32 s%d, s%d, s48" % (S_UNIT0, S_UNIT0))
    A("s_and_b32 s%d, s%d, 1" % (S_TB64, S_MEM))
    A("s_lshl_b32 s48, s%d, 1" % S_CL)
    A("s_add_u32 s%d, s%d, s48" % (S_TB64, S_TB64))
    A("s_lshr_b32 s%d, s%d, 1" % (S_CB, S_MEM))
    A("s_mul_i32 s%d, s%d, 22" % (S_U0, S_WV))
    A("s_and_b32 s48, s%d, 1" % S_J)
    A("s_lshl_b32 s48, s48, 1")
    A("s_and_b32 s49, s%d, 1" % S_MEM)
    A("s_add_u32 s48, s48, s49")
    A("s_mul_i32 s48, s48, 5")
    A("s_mul_i32 s49, s%d, 3" % S_CB)
    A("s_add_u32 s48, s48, s49")
    A("s_sub_u32 s49, s48, 20")
    A("s_cmp_ge_u32 s48, 20")
    A("s_cselect_b32 s%d, s49, s48" % S_ROT)
    A("s_cmp_eq_u32 s%d, 3" % S_WV)
    A("s_cselect_b32 s%d, 20, 22" % S_NU)

X0, X1 = 4, 8
KR = 12; VR = 26; WR_ = 36
VCQ, VRQ, VXO = 44, 45, 46
G1_ACC = 16
G1_SET = [64, 96]
G1_XA = 128; G1_WA = 132
G1_XE, G1_XO, G1_WM = 136, 137, 138
G1_CS = 140; G1_ONE = 144; WLA = 143
TCH = 254
TCW = 145 + 94
UL = 148
UA = 156
STV = 158
TPH = 240; TPA = 252

def g1_dma_lines():
    M = Sub()
    M("s_lshl_b32 s48, s%d, 12" % S_WV)
    M("s_add_u32 s48, s48, s%d" % S_XS)
    M("s_lshl_b32 s49, s%d, 7" % S_ST)
    M("s_mov_b32 m0, s48")
    M("s_mul_i32 s50, s%d, 3072" % S_WV)
    for i in range(4):
        M("buffer_load_dwordx4 v%d, s[16:19], s49 offen offset:%d lds" % (G1_XE if i % 2 == 0 else G1_XO, 1024 * i))
    M("s_add_u32 s50, s50, s%d" % S_WS_)
    M("s_add_u32 s50, s50, %d" % WR)
    M("s_mul_i32 s49, s%d, 176128" % S_ST)
    M("s_mov_b32 m0, s50")
    M("s_add_u32 s%d, s%d, 1" % (S_ST, S_ST))
    for m in range(3):
        M("buffer_load_dwordx4 v%d, s[20:23], s49 offen offset:%d lds" % (G1_WM + m, 1024 * m))
    M("s_add_u32 s%d, s%d, 16384" % (S_XS, S_XS))
    M("s_add_u32 s%d, s%d, 12288" % (S_WS_, S_WS_))
    M("s_cmp_eq_u32 s%d, %d" % (S_XS, NSLOT * 16384))
    M("s_cselect_b32 s%d, 0, s%d" % (S_XS, S_XS))
    M("s_cselect_b32 s%d, 0, s%d" % (S_WS_, S_WS_))
    return M.ins()

def touch(A, sr, base_lines_per_instr_expr, n):
    pass

def w_touch(A, sr, ms):
    A("s_mul_i32 s48, s%d, %d" % (S_J, 58 * 128))
    A("s_mov_b32 exec_hi, 0x3ffffff")
    for m in ms:
        A("s_mul_i32 s49, s%d, %d" % (m, 1856 * 128))
        A("s_add_u32 s49, s49, s48")
        A("buffer_load_dword v%d, v%d, s[%d:%d], s49 offen" % (TCH + 1, TCH, sr, sr + 3))
    A("s_mov_b32 exec_hi, -1")

def spread(A, main, side):
    n = len(main); m = len(side); k = 0
    for i, l in enumerate(main):
        A(l)
        tgt = (m * (i + 1)) // n
        while k < tgt: A(side[k]); k += 1
    while k < m: A(side[k]); k += 1

def w1_touch_lines(s):
    return ["\n".join(["s_mov_b64 exec, 0x7ff",
            "s_mov_b32 s51, %d" % (176128 * s),
            "buffer_load_dword v%d, v%d, s[20:23], s51 offen" % (TCH + 1, TCW),
            "s_mov_b64 exec, -1"])]

def prep_issue(A):
    A("v_and_b32 v%d, 15, v0" % VCQ)
    A("v_lshrrev_b32 v%d, 4, v0" % VRQ)
    A("s_lshl_b32 s51, s%d, 6" % S_J)
    A("v_lshlrev_b32 v60, 2, v%d" % VRQ)
    A("v_add_u32 v60, s51, v60")
    A("v_lshlrev_b32 v60, 10, v60")
    A("v_lshl_add_u32 v60, v%d, 3, v60" % VCQ)
    A("s_lshl_b32 s52, s%d, 7" % S_XCD)
    A("v_add_u32 v60, s52, v60")
    for r in range(7):
        if r != 3: A("v_add_u32 v%d, %d, v60" % (61 + r, ((r - 3) * 1024) & 0xffffffff))
    A("v_lshlrev_b32 v%d, 4, v1" % VXO)
    A("s_lshl_b32 s48, s%d, 7" % S_CL)
    A("s_lshl_b32 s49, s%d, 3" % S_MEM)
    A("s_add_u32 s48, s48, s49")
    A("s_lshl_b32 s49, s%d, 1" % S_WV)
    A("s_add_u32 s56, s48, s49")
    A("s_lshl_b32 s50, s56, 10")
    A("v_lshlrev_b32 v68, 5, v%d" % VCQ)
    A("s_lshl_b32 s53, s%d, 9" % S_XCD)
    A("v_lshlrev_b32 v%d, 4, v0" % TPA)
    A("v_lshlrev_b32 v%d, 7, v1" % TCH)
    A("s_lshl_b32 s55, s%d, 12" % S_CH0)
    A("s_waitcnt lgkmcnt(0)")
    srd(A, 12, P_K, 0x200000); srd(A, 16, P_V, 0x200000)
    for r in range(7):
        A("buffer_load_dwordx2 v[%d:%d], v%d, s[12:15], 0 offen" % (KR + 2 * r, KR + 2 * r + 1, 60 if r == 3 else 61 + r))
    srd(A, 20, P_SK, 4096)
    for r in range(4):
        A("buffer_load_dwordx2 v[%d:%d], v60, s[16:19], 0 offen offset:%d" % (VR + 2 * r, VR + 2 * r + 1, 1024 * r))
    srd(A, 8, P_Q, 0x200000)
    A("buffer_load_dwordx4 v[%d:%d], v68, s[20:23], s53 offen" % (WR_, WR_ + 3))
    A("buffer_load_dwordx4 v[%d:%d], v68, s[20:23], s53 offen offset:16" % (WR_ + 4, WR_ + 7))
    A("buffer_load_dwordx4 v[%d:%d], v%d, s[8:11], s50 offen" % (X0, X0 + 3, VXO))
    A("buffer_load_dwordx4 v[%d:%d], v%d, s[8:11], s50 offen offset:1024" % (X1, X1 + 3, VXO))
    srd(A, 20, P_W2, 1376 * 512 * 2)
    A("v_lshrrev_b32 v70, 3, v1")
    A("v_lshlrev_b32 v70, 11, v70")
    A("v_and_b32 v71, 7, v1")
    A("v_lshl_add_u32 v70, v71, 4, v70")
    A("s_lshl_b32 s48, s%d, 7" % S_XCD)
    A("v_add_u32 v70, s48, v70")
    A("v_xor_b32 v71, 64, v70")
    A("s_lshl_b32 s48, s%d, 5" % S_WV)
    A("s_add_u32 s%d, s48, s%d" % (S_IT, S_J))
    A("s_lshl_b32 s49, s%d, 14" % S_IT)
    A("s_lshl_b32 s48, s%d, 11" % S_WV)
    A("s_add_u32 s48, s48, %d" % W2S)
    A("s_mov_b32 m0, s48")
    A("s_nop 0")
    A("buffer_load_dwordx4 v70, s[20:23], s49 offen lds")
    A("buffer_load_dwordx4 v71, s[20:23], s49 offen offset:1024 lds")
    for ch in range(2):
        d = 8 + 4 * ch
        A("s_add_u32 s%d, s%d, s55" % (d, P_SSMK)); A("s_addc_u32 s%d, s%d, 0" % (d + 1, P_SSMK + 1))
        if ch == 1:
            A("s_add_u32 s%d, s%d, 4096" % (d, d)); A("s_addc_u32 s%d, s%d, 0" % (d + 1, d + 1))
        A("s_mov_b32 s%d, 4096" % (d + 2)); A("s_mov_b32 s%d, 0x20000" % (d + 3))
    for ch in range(2):
        d = 8 + 4 * ch; b = TPH + 6 * ch
        A("buffer_load_dwordx4 v[%d:%d], v%d, s[%d:%d], 0 offen" % (b, b + 3, TPA, d, d + 3))
        A("buffer_load_dwordx2 v[%d:%d], v%d, s[%d:%d], 0 offen offset:16" % (b + 4, b + 5, TPA, d, d + 3))
    srd(A, 16, P_Q, 0x200000)
    srd(A, 20, P_W1, 512 * 1376 * 2)
    A("s_mul_i32 s48, s%d, 43" % S_J)
    A("s_mul_i32 s49, s%d, 11" % S_WV)
    A("s_add_u32 s48, s48, s49")
    A("v_add_u32 v%d, s48, v1" % TCW)
    A("v_lshlrev_b32 v%d, 7, v%d" % (TCW, TCW))
    for l in w1_touch_lines(0) + w1_touch_lines(1): A(l)
    A("s_add_u32 s48, s%d, 0x%x" % (P_WS, WS_FLAG)); A("s_addc_u32 s49, s%d, 0" % (P_WS + 1))
    A("s_load_dword s%d, s[48:49], 0" % S_E)
    T = 70
    A("v_lshrrev_b32 v%d, 3, v1" % T)
    A("v_and_b32 v%d, 7, v1" % (T + 1))
    A("v_lshrrev_b32 v%d, 1, v%d" % (T + 2, T))
    A("v_xor_b32 v%d, v%d, v%d" % (T + 1, T + 1, T + 2))
    A("s_lshl_b32 s48, s%d, 7" % S_CL)
    A("s_lshl_b32 s49, s%d, 5" % S_WV)
    A("s_add_u32 s48, s48, s49")
    A("v_lshlrev_b32 v%d, 2, v%d" % (T, T))
    A("v_add_u32 v%d, s48, v%d" % (T, T))
    A("v_lshlrev_b32 v%d, 10, v%d" % (T, T))
    A("v_lshl_add_u32 v%d, v%d, 4, v%d" % (G1_XE, T + 1, T))
    A("v_xor_b32 v%d, 64, v%d" % (G1_XO, G1_XE))
    A("s_mul_i32 s48, s%d, 192" % S_WV)
    A("s_lshl_b32 s49, s%d, 6" % S_UNIT0)
    A("s_mov_b32 s54, 43691")
    for m in range(3):
        A("v_add_u32 v%d, s48, v1" % T)
        if m: A("v_add_u32 v%d, %d, v%d" % (T, 64 * m, T))
        A("v_mul_lo_u32 v%d, v%d, s54" % (T + 1, T))
        A("v_lshrrev_b32 v%d, 19, v%d" % (T + 1, T + 1))
        A("v_mul_u32_u24 v%d, 12, v%d" % (T + 2, T + 1))
        A("v_sub_u32 v%d, v%d, v%d" % (T + 2, T, T + 2))
        A("v_mul_u32_u24 v%d, 2752, v%d" % (T + 1, T + 1))
        A("v_lshl_add_u32 v%d, v%d, 4, v%d" % (T + 1, T + 2, T + 1))
        A("v_add_u32 v%d, s49, v%d" % (T + 1, T + 1))
        if m: A("v_subrev_u32 v%d, %d, v%d" % (G1_WM + m, 1024 * m, T + 1))
        else: A("v_mov_b32 v%d, v%d" % (G1_WM, T + 1))
    A("s_mov_b32 s%d, 0" % S_ST); A("s_mov_b32 s%d, 0" % S_XS); A("s_mov_b32 s%d, 0" % S_WS_); A("s_mov_b32 s%d, 0" % S_RS)
    T = 72
    A("v_and_b32 v%d, 31, v1" % T)
    A("v_lshrrev_b32 v%d, 5, v1" % (T + 1))
    A("v_bfe_u32 v%d, v1, 1, 3" % (T + 2))
    A("v_xor_b32 v%d, v%d, v%d" % (T + 2, T + 2, T + 1))
    A("s_lshl_b32 s48, s%d, 12" % S_WV)
    A("v_lshlrev_b32 v%d, 7, v%d" % (T, T))
    A("v_add_u32 v%d, s48, v%d" % (T, T))
    A("v_bfe_u32 v%d, v1, 2, 2" % (T + 4))
    A("v_lshl_add_u32 v%d, v%d, 3, v%d" % (T + 4, T + 1, T + 4))
    A("v_mul_u32_u24 v%d, 192, v%d" % (T + 4, T + 4))
    A("v_bfe_u32 v%d, v1, 4, 1" % (T + 5))
    A("v_lshl_add_u32 v%d, v%d, 5, v%d" % (T + 4, T + 5, T + 4))
    A("v_and_b32 v%d, 3, v1" % (T + 5))
    A("v_lshl_add_u32 v%d, v%d, 3, v%d" % (T + 4, T + 5, T + 4))
    A("v_add_u32 v%d, %d, v%d" % (T + 4, WR, T + 4))
    for p in range(4):
        A("s_add_u32 s48, s%d, %d" % (S_WV, p))
        A("s_and_b32 s48, s48, 3")
        A("s_lshl_b32 s49, s48, 1")
        A("v_xor_b32 v%d, s49, v%d" % (T + 3, T + 2))
        A("v_lshl_add_u32 v%d, v%d, 4, v%d" % (G1_XA + p, T + 3, T))
        A("s_mul_i32 s49, s48, 3072")
        A("v_add_u32 v%d, s49, v%d" % (G1_WA + p, T + 4))

def prep_compute(A):
    A("s_waitcnt vmcnt(10)")
    stamp(A)
    M = Sub()
    KF = 160; VF = 188; WF = 204; AC = 220; PK = 64
    for r in range(7): unpack(M, KF + 4 * r, KR + 2 * r, 2)
    for c in range(4):
        M("v_lshlrev_b32 v%d, 16, v%d" % (WF + 0 + c, WR_ + 2 * c))
        M("v_and_b32 v%d, 0xffff0000, v%d" % (WF + 4 + c, WR_ + 2 * c))
        M("v_lshlrev_b32 v%d, 16, v%d" % (WF + 8 + c, WR_ + 2 * c + 1))
        M("v_and_b32 v%d, 0xffff0000, v%d" % (WF + 12 + c, WR_ + 2 * c + 1))
    for r in range(4): unpack(M, VF + 4 * r, VR + 2 * r, 2)
    def pk(op, d, a, b, c=None):
        if c is None: M("%s v[%d:%d], v[%d:%d], v[%d:%d]" % (op, d, d + 1, a, a + 1, b, b + 1))
        else: M("%s v[%d:%d], v[%d:%d], v[%d:%d], v[%d:%d]" % (op, d, d + 1, a, a + 1, b, b + 1, c, c + 1))
    for o in range(4):
        for h in range(2): pk("v_pk_mul_f32", AC + 4 * o + 2 * h, KF + 4 * o + 2 * h, WF + 12 + 2 * h)
    for j in (2, 1, 0):
        for o in range(4):
            for h in range(2): pk("v_pk_fma_f32", AC + 4 * o + 2 * h, KF + 4 * (3 + o - j) + 2 * h, WF + 4 * j + 2 * h, AC + 4 * o + 2 * h)
    for o in range(4):
        for h in range(2): pk("v_pk_mul_f32", AC + 4 * o + 2 * h, AC + 4 * o + 2 * h, VF + 4 * o + 2 * h)
    for c in range(4):
        M("v_cvt_pk_bf16_f32 v%d, v%d, v%d" % (PK + 2 * c, AC + 12 + c, AC + 8 + c))
        M("v_cvt_pk_bf16_f32 v%d, v%d, v%d" % (PK + 2 * c + 1, AC + 4 + c, AC + c))
    VP, VA = 78, 79
    M("v_sub_u32 v%d, 15, v%d" % (VP, VRQ))
    M("v_lshrrev_b32 v%d, 1, v%d" % (VA, VP))
    M("v_and_b32 v%d, 7, v%d" % (VA + 1, VCQ))
    M("v_xor_b32 v%d, v%d, v%d" % (VA, VA, VA + 1))
    M("v_lshlrev_b32 v%d, 4, v%d" % (VA, VA))
    M("v_and_b32 v%d, 1, v%d" % (VP, VP))
    M("v_lshl_add_u32 v%d, v%d, 3, v%d" % (VA, VP, VA))
    M("v_lshl_add_u32 v%d, v%d, 9, v%d" % (VA, VCQ, VA))
    M("v_add_u32 v%d, %d, v%d" % (VA, KVT_T, VA))
    for c in range(4): M("ds_write_b64 v%d, v[%d:%d] offset:%d" % (VA, PK + 2 * c, PK + 2 * c + 1, 128 * c))
    spread(A, M.ins(), g1_dma_lines() + w1_touch_lines(2))
    A("s_waitcnt vmcnt(16)")
    M = Sub()
    U0, U1 = 84, 92
    unpack(M, U0, X0, 4); unpack(M, U1, X1, 4)
    R0, R1 = 100, 102
    for (U, R) in ((U0, R0), (U1, R1)): pk("v_pk_add_f32", R, U, U + 2)
    for i in (4, 6):
        for (U, R) in ((U0, R0), (U1, R1)): pk("v_pk_add_f32", R, R, U + i)
    for (U, R) in ((U0, R0), (U1, R1)): M("v_add_f32 v%d, v%d, v%d" % (R, R, R + 1))
    wave_reduce(M, [R0, R1], [54, 55])
    M("s_mov_b32 s52, 0x3b000000")
    M0_, M1_ = 104, 106
    M("v_mov_b32 v%d, s54" % M0_); M("v_mov_b32 v%d, s55" % M1_)
    M("v_mul_f32 v%d, s52, v%d" % (M0_, M0_)); M("v_mul_f32 v%d, s52, v%d" % (M1_, M1_))
    M("v_mov_b32 v%d, v%d" % (M0_ + 1, M0_)); M("v_mov_b32 v%d, v%d" % (M1_ + 1, M1_))
    for i in range(0, 8, 2):
        for (U, Mm) in ((U0, M0_), (U1, M1_)):
            M("v_pk_add_f32 v[%d:%d], v[%d:%d], v[%d:%d] neg_lo:[0,1] neg_hi:[0,1]" % (U + i, U + i + 1, U + i, U + i + 1, Mm, Mm + 1))
    for (D, R) in ((U0, R0), (U1, R1)): pk("v_pk_mul_f32", R, D, D)
    for i in (2, 4, 6):
        for (D, R) in ((U0, R0), (U1, R1)): pk("v_pk_fma_f32", R, D + i, D + i, R)
    for (D, R) in ((U0, R0), (U1, R1)): M("v_add_f32 v%d, v%d, v%d" % (R, R, R + 1))
    wave_reduce(M, [R0, R1], [54, 55])
    M("v_mov_b32 v%d, s54" % R0); M("v_mov_b32 v%d, s55" % R1)
    M("s_mov_b32 s53, 0x3727c5ac")
    RR = ((R0, M0_), (R1, M1_))
    for (R, Mm) in RR: M("v_mul_f32 v%d, s52, v%d" % (R, R))
    for (R, Mm) in RR: bf16_round(M, R, R)
    for (R, Mm) in RR: M("v_add_f32 v%d, s53, v%d" % (R, R))
    for (R, Mm) in RR: bf16_round(M, R, R)
    for (R, Mm) in RR: M("v_sqrt_f32 v%d, v%d" % (R, R))
    for (R, Mm) in RR: bf16_round(M, Mm, Mm)
    for (R, Mm) in RR: bf16_round(M, R, R)
    for (R, Mm) in RR: M("v_rcp_f32 v%d, v%d" % (R, R))
    ST4 = 108
    M("v_mov_b32 v%d, v%d" % (ST4, M0_)); M("v_mov_b32 v%d, v%d" % (ST4 + 2, M1_))
    M("v_mov_b32 v%d, v%d" % (ST4 + 1, R0)); M("v_mov_b32 v%d, v%d" % (ST4 + 3, R1))
    spread(A, M.ins(), g1_dma_lines() + w1_touch_lines(3))
    for i in range(4): A("v_mov_b32 v%d, 0" % (112 + i))
    A("v_lshlrev_b32 v116, 4, v1")
    A("v_add_u32 v116, %d, v116" % CSB)
    A("s_mov_b64 exec, 0xffffff")
    A("ds_write_b128 v116, v[112:115]")
    A("s_mov_b64 exec, -1")
    A("s_waitcnt vmcnt(18)")
    T = 118
    A("v_bfe_u32 v%d, v1, 2, 1" % T)
    A("v_lshlrev_b32 v%d, 10, v%d" % (T + 1, T))
    A("v_lshrrev_b32 v%d, 5, v1" % (T + 2))
    A("v_lshl_add_u32 v%d, v%d, 8, v%d" % (T + 1, T + 2, T + 1))
    A("v_bfe_u32 v%d, v1, 3, 1" % (T + 2))
    A("v_lshl_add_u32 v%d, v%d, 7, v%d" % (T + 1, T + 2, T + 1))
    A("v_bfe_u32 v%d, v1, 4, 1" % (T + 2))
    A("v_lshlrev_b32 v%d, 1, v%d" % (T + 2, T + 2))
    A("v_bfe_u32 v%d, v1, 1, 1" % (T + 3))
    A("v_add_u32 v%d, v%d, v%d" % (T + 2, T + 2, T + 3))
    A("v_lshl_add_u32 v%d, v%d, 2, v%d" % (T + 2, T, T + 2))
    A("v_lshl_add_u32 v%d, v%d, 4, v%d" % (T + 1, T + 2, T + 1))
    A("v_and_b32 v%d, 1, v1" % (T + 2))
    A("v_lshl_add_u32 v%d, v%d, 3, v%d" % (T + 1, T + 2, T + 1))
    A("s_lshl_b32 s48, s%d, 11" % S_WV)
    A("s_add_u32 s48, s48, %d" % W2S)
    A("v_add_u32 v%d, s48, v%d" % (T + 4, T + 1))
    A("v_xor_b32 v%d, 64, v%d" % (T + 5, T + 4))
    WQ = 64
    for dt in range(2):
        for h in range(2):
            b = WQ + 4 * dt + 2 * h
            A("ds_read_b64_tr_b16 v[%d:%d], v%d offset:%d" % (b, b + 1, T + 4 + dt, 512 * h))
    A("s_mul_i32 s48, s%d, %d" % (S_XCD, 86 * 2048))
    A("s_add_u32 s48, s48, 0x%x" % WS_W2F)
    A("s_add_u32 s12, s%d, s48" % P_WS); A("s_addc_u32 s13, s%d, 0" % (P_WS + 1))
    A("s_mov_b32 s14, %d" % (86 * 2048)); A("s_mov_b32 s15, 0x20000")
    A("s_lshl_b32 s48, s%d, 11" % S_IT)
    A("v_lshlrev_b32 v%d, 4, v1" % T)
    A("s_waitcnt lgkmcnt(0)")
    A("buffer_store_dwordx4 v[%d:%d], v%d, s[12:15], s48 offen %s" % (WQ, WQ + 3, T, SC))
    A("buffer_store_dwordx4 v[%d:%d], v%d, s[12:15], s48 offen offset:1024 %s" % (WQ + 4, WQ + 7, T, SC))
    toeplitz_build(A)
    A("s_waitcnt vmcnt(11) lgkmcnt(0)")
    A("s_barrier")
    VRP, VCG = 110, 111
    VRP, VCG = 112, 113
    A("v_lshrrev_b32 v%d, 3, v0" % VRP)
    A("v_and_b32 v%d, 7, v0" % VCG)
    VB = 114; RD = 116
    A("v_bfe_u32 v%d, v%d, 2, 3" % (VB, VRP))
    A("v_xor_b32 v%d, v%d, v%d" % (VB, VB, VCG))
    A("v_lshlrev_b32 v%d, 4, v%d" % (VB, VB))
    A("v_lshl_add_u32 v%d, v%d, 7, v%d" % (VB, VRP, VB))
    A("v_add_u32 v%d, %d, v%d" % (VB, KVT_T, VB))
    A("ds_read_b128 v[%d:%d], v%d" % (RD, RD + 3, VB))
    A("ds_read_b128 v[%d:%d], v%d offset:4096" % (RD + 4, RD + 7, VB))
    srd(A, 12, P_WS, 0x200000, WS_KVT)
    srd(A, 8, P_WS, 2048 * 8, WS_ST)
    VG = 124
    A("v_lshlrev_b32 v%d, 12, v%d" % (VG, VRP))
    A("v_lshl_add_u32 v%d, v%d, 4, v%d" % (VG, VCG, VG))
    A("s_lshl_b32 s54, s%d, 18" % S_XCD)
    A("s_lshl_b32 s55, s%d, 7" % S_J)
    A("s_sub_u32 s55, 3968, s55")
    A("s_add_u32 s54, s54, s55")
    A("s_add_u32 s55, s54, 0x20000")
    A("s_lshl_b32 s50, s56, 3")
    A("v_mov_b32 v%d, 0" % (VG + 1))
    A("s_mov_b64 exec, 1")
    A("buffer_store_dwordx4 v[%d:%d], v%d, s[8:11], s50 offen %s" % (ST4, ST4 + 3, VG + 1, SC))
    A("s_mov_b64 exec, -1")
    A("s_waitcnt lgkmcnt(0)")
    A("buffer_store_dwordx4 v[%d:%d], v%d, s[12:15], s54 offen %s" % (RD, RD + 3, VG, SC))
    A("buffer_store_dwordx4 v[%d:%d], v%d, s[12:15], s55 offen %s" % (RD + 4, RD + 7, VG, SC))
    A("s_mul_i32 s%d, s%d, 0x9E3779B1" % (S_NONCE, S_E))
    A("s_add_u32 s%d, s%d, 0x7F4A7C15" % (S_NONCE, S_NONCE))

def toeplitz_build(A):
    T = 160
    A("v_add_u32 v%d, %d, v%d" % (TPA + 1, TOEP + 32, TPA))
    for ch in range(2):
        H = TPH + 6 * ch; o = ch * 16640; b = T + 12 * ch
        for i in range(4): A("v_alignbyte_b32 v%d, v%d, v%d, 2" % (b + i, H + i + 1, H + i))
        for i in range(4): A("v_alignbyte_b32 v%d, v%d, v%d, 2" % (b + 4 + i, H + i + 2, H + i + 1))
        for i in range(4): A("v_mov_b32 v%d, v%d" % (b + 8 + i, H + i + 1))
        A("ds_write_b128 v%d, v[%d:%d] offset:%d" % (TPA + 1, H, H + 3, o))
        A("ds_write_b128 v%d, v[%d:%d] offset:%d" % (TPA + 1, b, b + 3, o + CS))
        A("ds_write_b128 v%d, v[%d:%d] offset:%d" % (TPA + 1, b + 8, b + 11, o + 2 * CS))
        A("ds_write_b128 v%d, v[%d:%d] offset:%d" % (TPA + 1, b + 4, b + 7, o + 3 * CS))
    Ld = newlabel("toep")
    A("s_cmp_lg_u32 s%d, 0" % S_WV)
    A("s_cbranch_scc1 %s" % Ld)
    T = 184; Z = T + 8
    for i in range(4): A("v_mov_b32 v%d, 0" % (Z + i))
    A("v_lshrrev_b32 v%d, 3, v1" % T)
    A("v_mul_u32_u24 v%d, 16640, v%d" % (T, T))
    A("v_bfe_u32 v%d, v1, 1, 2" % (T + 1))
    A("v_mul_u32_u24 v%d, %d, v%d" % (T + 1, CS, T + 1))
    A("v_add_u32 v%d, v%d, v%d" % (T, T, T + 1))
    A("v_and_b32 v%d, 1, v1" % (T + 1))
    A("v_lshl_add_u32 v%d, v%d, 4, v%d" % (T, T + 1, T))
    A("v_add_u32 v%d, %d, v%d" % (T, TOEP, T))
    A("s_mov_b64 exec, 0xffff")
    A("ds_write_b128 v%d, v[%d:%d]" % (T, Z, Z + 3))
    A("s_mov_b64 exec, 1")
    A("v_mov_b32 v%d, %d" % (T + 2, TOEP))
    for ch in range(2):
        L0 = TPH + 6 * ch; o = ch * 16640
        A("v_alignbyte_b32 v%d, v%d, v%d, 2" % (T + 3, L0, Z))
        A("v_alignbyte_b32 v%d, v%d, v%d, 2" % (T + 4, L0 + 1, L0))
        A("ds_write_b32 v%d, v%d offset:%d" % (T + 2, L0, o + 2 * CS + 28))
        A("ds_write_b32 v%d, v%d offset:%d" % (T + 2, T + 3, o + CS + 28))
        A("ds_write_b32 v%d, v%d offset:%d" % (T + 2, T + 3, o + 3 * CS + 24))
        A("ds_write_b32 v%d, v%d offset:%d" % (T + 2, T + 4, o + 3 * CS + 28))
    A("s_mov_b64 exec, -1")
    A.label(Ld)

CSA = 176
G1_ONES = 144
def g1_reads(setb, p0):
    L = []
    for kk in range(2):
        p = p0 + kk; b = setb + 16 * kk
        L.append("ds_read_b128 v[%d:%d], v%d" % (b + 12, b + 15, G1_XA + p))
        for f in range(3):
            for h in range(2):
                L.append("ds_read_b64_tr_b16 v[%d:%d], v%d offset:%d" % (b + 4 * f + 2 * h, b + 4 * f + 2 * h + 1, G1_WA + p, 768 * h + 64 * f))
    return L

def g1_mfma(setb, cs=False):
    L = []
    for kk in range(2):
        b = setb + 16 * kk
        for f in range(3):
            L.append("v_mfma_f32_32x32x16_bf16 v[%d:%d], v[%d:%d], v[%d:%d], v[%d:%d]" % (
                G1_ACC + 16 * f, G1_ACC + 16 * f + 15, b + 4 * f, b + 4 * f + 3, b + 12, b + 15, G1_ACC + 16 * f, G1_ACC + 16 * f + 15))
        if cs and kk == 0:
            for f in range(3):
                L.append("v_mfma_f32_32x32x16_bf16 a[%d:%d], v[%d:%d], v[%d:%d], a[%d:%d]" % (
                    CSA + 16 * f, CSA + 16 * f + 15, G1_ONES, G1_ONES + 3, b + 4 * f, b + 4 * f + 3, CSA + 16 * f, CSA + 16 * f + 15))
    return L

def g1_rdadv():
    L = ["s_add_u32 s%d, s%d, 1" % (S_RS, S_RS), "s_cmp_eq_u32 s%d, %d" % (S_RS, NSLOT), "s_cselect_b32 s%d, 0, s%d" % (S_RS, S_RS),
         "s_movk_i32 s52, 16384", "s_movk_i32 s53, 12288", "s_cselect_b32 s52, %d, s52" % (-16384 * (NSLOT - 1)), "s_cselect_b32 s53, %d, s53" % (-12288 * (NSLOT - 1))]
    for p in range(4): L.append("v_add_u32 v%d, s52, v%d" % (G1_XA + p, G1_XA + p))
    for p in range(4): L.append("v_add_u32 v%d, s53, v%d" % (G1_WA + p, G1_WA + p))
    return L

def w_load_lines(p):
    return ["s_add_u32 s51, s%d, s%d" % (S_U0, S_WPOS),
            "s_lshl_b32 s51, s51, 11",
            "buffer_load_dwordx4 a[%d:%d], v%d, s[12:15], s51 offen %s" % (8 * p, 8 * p + 3, WLA, SCL),
            "s_add_u32 s%d, s%d, 1\ns_cmp_eq_u32 s%d, s%d\ns_cselect_b32 s%d, 0, s%d" % (S_WPOS, S_WPOS, S_WPOS, S_NU, S_WPOS, S_WPOS),
            "buffer_load_dwordx4 a[%d:%d], v%d, s[12:15], s51 offen offset:1024 %s" % (8 * p + 4, 8 * p + 7, WLA, SCL)]

def gemm1(A):
    for l in g1_dma_lines(): A(l)
    for l in g1_reads(G1_SET[0], 0): A(l)
    for i in range(4): A("v_mov_b32 v%d, 0x3f803f80" % (G1_ONES + i))
    for i in range(48): A("v_mov_b32 v%d, 0" % (G1_ACC + i))
    for i in range(48): A("v_accvgpr_write_b32 a%d, 0" % (CSA + i))
    waits = [18, 13, 13, 15, 7, 14, 12, None]
    wpos = [0]
    def wl(n):
        L = []
        for _ in range(n // 2):
            L += w_load_lines(wpos[0]); wpos[0] += 1
        return L
    def lstamp(idx):
        if cfg.lprof:
            A("s_memrealtime s[96:97]"); A("s_waitcnt lgkmcnt(0)")
            A("v_mov_b32 v252, s96"); A("v_cmp_eq_u32 vcc, %d, v1" % idx); A("v_cndmask_b32 v253, v253, v252, vcc")
    def weave2(mf, rd, side, per=3):
        n = len(mf); k = 0; j = 0
        for i, m in enumerate(mf):
            A(m)
            for _ in range(per):
                if k < len(rd): A(rd[k]); k += 1
            tgt = (len(side) * (i + 1)) // n
            while j < tgt: A(side[j]); j += 1
        while k < len(rd): A(rd[k]); k += 1
        while j < len(side): A(side[j]); j += 1
    for it in range(8):
        A("s_waitcnt lgkmcnt(0)")
        lstamp(2 * it)
        rdB = g1_reads(G1_SET[1], 2)
        dm = g1_dma_lines() if it + 3 < 8 else []
        dm1, dm2 = dm[:9], dm[9:]
        side = (w1_touch_lines(it + 4) if it + 4 < 8 else []) + dm1
        if it >= 5: side = wl(4)
        weave2(g1_mfma(G1_SET[0], True), rdB, side)
        if it == 3:
            A("s_lshl_b32 s48, s%d, 5" % S_XCD)
            A("v_add_u32 v2, s48, v1")
            A("v_lshlrev_b32 v2, 7, v2")
            A("v_add_u32 v2, 0x%x, v2" % (WS_FLAG + FL_P))
            A("s_mov_b64 exec, 0xffffffff")
            A("global_load_dword v3, v2, s[%d:%d] %s" % (P_WS, P_WS + 1, SCL))
            A("s_lshl_b32 s48, s%d, 5" % S_CB)
            A("v_add_u32 v160, s48, v1")
            A("v_lshlrev_b32 v160, 7, v160")
            A("v_add_u32 v160, 0x%x, v160" % (WS_FLAG + FL_P))
            A("global_load_dword v161, v160, s[%d:%d] %s" % (P_WS, P_WS + 1, SCL))
            A("s_mov_b64 exec, -1")
        if waits[it] is not None:
            A("s_waitcnt vmcnt(%d) lgkmcnt(0)" % waits[it])
            lstamp(2 * it + 1)
            A("s_barrier")
        else:
            A("s_waitcnt lgkmcnt(0)")
        if it == 1: flag_store(A, FL_P)
        if it == 4:
            Lok = newlabel("pok")
            A("s_mov_b64 exec, 0xffffffff")
            A("v_cmp_ne_u32 vcc, s%d, v3" % S_NONCE)
            A("s_mov_b64 exec, -1")
            A("s_cbranch_vccz %s" % Lok)
            poll(A, FL_P, S_XCD, 32, 1)
            A.label(Lok)
            Lok2 = newlabel("pok")
            A("s_mov_b64 exec, 0xffffffff")
            A("v_cmp_ne_u32 vcc, s%d, v161" % S_NONCE)
            A("s_mov_b64 exec, -1")
            A("s_cbranch_vccz %s" % Lok2)
            poll(A, FL_P, S_CB, 32, 1)
            A.label(Lok2)
            A("s_lshl_b32 s48, s%d, 12" % S_CH0)
            A("s_add_u32 s12, s%d, s48" % P_WS); A("s_addc_u32 s13, s%d, 0" % (P_WS + 1))
            A("s_add_u32 s12, s12, 0x%x" % WS_KVT); A("s_addc_u32 s13, s13, 0")
            A("s_mov_b32 s14, 8192"); A("s_mov_b32 s15, 0x20000")
            A("v_lshlrev_b32 v%d, 4, v0" % UA)
            A("s_movk_i32 s48, 4096")
            A("buffer_load_dwordx4 v[%d:%d], v%d, s[12:15], 0 offen %s" % (UL, UL + 3, UA, SCL))
            A("buffer_load_dwordx4 v[%d:%d], v%d, s[12:15], s48 offen %s" % (UL + 4, UL + 7, UA, SCL))
            srd(A, 8, P_WS, 2048 * 8, WS_ST)
            A("v_and_b32 v2, 7, v1")
            A("v_lshlrev_b32 v2, 2, v2")
            A("v_bfe_u32 v3, v1, 3, 2")
            A("v_add_u32 v2, v2, v3")
            A("v_lshlrev_b32 v2, 3, v2")
            A("s_lshl_b32 s48, s%d, 2" % S_CL)
            A("s_add_u32 s48, s48, s%d" % S_WV)
            A("s_lshl_b32 s48, s48, 8")
            A("buffer_load_dwordx2 v[%d:%d], v2, s[8:11], s48 offen %s" % (STV, STV + 1, SCL))
        if it < 7:
            slot_next = (it + 1) % NSLOT
            dx = 16384 if slot_next else -16384 * (NSLOT - 1)
            dw = 12288 if slot_next else -12288 * (NSLOT - 1)
            adv = ["v_add_u32 v%d, %d, v%d" % (G1_XA + p, dx & 0xffffffff, G1_XA + p) for p in range(4)]
            adv += ["v_add_u32 v%d, %d, v%d" % (G1_WA + p, dw & 0xffffffff, G1_WA + p) for p in range(4)]
            rd = g1_reads(G1_SET[0], 0)
            for l in [adv[0], adv[4], adv[1], adv[5]]: A(l)
            weave2(g1_mfma(G1_SET[1]), rd + [adv[2], adv[6], adv[3], adv[7]], dm2 if it < 5 else wl(4))
            if it == 4:
                A("s_mul_i32 s48, s%d, %d" % (S_CB, 86 * 2048))
                A("s_add_u32 s48, s48, 0x%x" % WS_W2F)
                A("s_add_u32 s12, s%d, s48" % P_WS); A("s_addc_u32 s13, s%d, 0" % (P_WS + 1))
                A("s_mov_b32 s14, %d" % (86 * 2048)); A("s_mov_b32 s15, 0x20000")
                A("s_mov_b32 s%d, s%d" % (S_WPOS, S_ROT))
                A("v_lshlrev_b32 v%d, 4, v1" % WLA)
        else:
            weave2(g1_mfma(G1_SET[1]), [], wl(2))
    stamp(A)
    if cfg.prof: A("v_accvgpr_write_b32 a255, v253")
    A("v_and_b32 v2, 31, v1")
    A("v_lshlrev_b32 v2, 2, v2")
    A("v_add_u32 v2, %d, v2" % CSB)
    for f in range(3): A("v_accvgpr_read_b32 v%d, a%d" % (G1_CS + f, CSA + 16 * f))
    A("s_mov_b32 exec_hi, 0")
    for f in range(3): A("ds_add_f32 v2, v%d offset:%d" % (G1_CS + f, 128 * f))
    A("s_mov_b32 exec_hi, -1")
    A("v_add_u32 v%d, %d, v%d" % (UA + 1, UB, UA))
    A("ds_write_b128 v%d, v[%d:%d]" % (UA + 1, UL, UL + 3))
    A("ds_write_b128 v%d, v[%d:%d] offset:4608" % (UA + 1, UL + 4, UL + 7))
    Lp = newlabel("upad")
    A("s_cmp_lg_u32 s%d, 0" % S_WV)
    A("s_cbranch_scc1 %s" % Lp)
    Z = 116
    for i in range(4): A("v_mov_b32 v%d, 0" % (Z + i))
    A("v_lshrrev_b32 v%d, 5, v1" % (Z + 4))
    A("v_mul_u32_u24 v%d, 4608, v%d" % (Z + 4, Z + 4))
    A("v_and_b32 v%d, 31, v1" % (Z + 5))
    A("v_lshl_add_u32 v%d, v%d, 4, v%d" % (Z + 4, Z + 5, Z + 4))
    A("v_add_u32 v%d, %d, v%d" % (Z + 4, UB + 4096, Z + 4))
    A("ds_write_b128 v%d, v[%d:%d]" % (Z + 4, Z, Z + 3))
    A.label(Lp)
    A("s_waitcnt lgkmcnt(0)")
    A("s_barrier")
    stamp(A)
    CSV = 64
    A("v_lshrrev_b32 v2, 5, v1")
    A("v_lshlrev_b32 v2, 4, v2")
    A("v_add_u32 v2, %d, v2" % CSB)
    for f in range(3):
        for g in range(4):
            b = CSV + 16 * f + 4 * g
            A("ds_read_b128 v[%d:%d], v2 offset:%d" % (b, b + 3, 128 * f + 32 * g))
    NM = 112
    A("v_sub_f32 v%d, 0, v%d" % (NM, STV))
    A("v_mov_b32 v%d, v%d" % (NM + 1, NM))
    srd(A, 16, P_WS, 64 * 86 * 1024, WS_H)
    A("s_lshl_b32 s48, s%d, 2" % S_CL)
    A("s_add_u32 s48, s48, s%d" % S_WV)
    A("s_mul_i32 s48, s48, 86")
    A("s_lshl_b32 s49, s%d, 1" % S_UNIT0)
    A("s_add_u32 s48, s48, s49")
    A("s_lshl_b32 s56, s48, 10")
    A("s_add_u32 s55, s56, 4096")
    VA = 114; PK = 116
    A("v_lshlrev_b32 v%d, 4, v1" % VA)
    A("s_waitcnt lgkmcnt(0)")
    Ls = newlabel("g1s")
    for f in range(3):
        if f == 2:
            A("s_cmp_ge_u32 s%d, 11" % S_MEM)
            A("s_cbranch_scc1 %s" % Ls)
        for i in range(0, 16, 2):
            a = G1_ACC + 16 * f + i; c = CSV + 16 * f + i
            A("v_pk_fma_f32 v[%d:%d], v[%d:%d], v[%d:%d], v[%d:%d]" % (a, a + 1, c, c + 1, NM, NM + 1, a, a + 1))
        P_ = PK + 8 * f
        for i in range(8):
            A("v_cvt_pk_bf16_f32 v%d, v%d, v%d" % (P_ + i, G1_ACC + 16 * f + 2 * i, G1_ACC + 16 * f + 2 * i + 1))
        for i in range(8):
            A("v_pk_max_i16 v%d, v%d, 0" % (P_ + i, P_ + i))
        for h in range(2):
            off = f * 2048 + h * 1024
            so = "s56" if off < 4096 else "s55"
            A("buffer_store_dwordx4 v[%d:%d], v%d, s[16:19], %s offen offset:%d %s" % (P_ + 4 * h, P_ + 4 * h + 3, VA, so, off % 4096, SC))
    A.label(Ls)

SG_E, SG_O, SG_R0, SG_R1 = 4, 5, 6, 7
def stage_setup(A):
    srd(A, 20, P_W2, 1376 * 512 * 2)
    T = 10
    A("v_lshrrev_b32 v%d, 3, v1" % T)
    A("v_lshlrev_b32 v%d, 11, v%d" % (T, T))
    A("v_and_b32 v%d, 7, v1" % (T + 1))
    A("v_lshl_add_u32 v%d, v%d, 4, v%d" % (T, T + 1, T))
    A("s_lshl_b32 s48, s%d, 7" % S_CB)
    A("v_add_u32 v%d, s48, v%d" % (SG_E, T))
    A("v_xor_b32 v%d, 64, v%d" % (SG_O, SG_E))
    A("v_bfe_u32 v%d, v1, 2, 1" % T)
    A("v_lshlrev_b32 v%d, 10, v%d" % (T + 1, T))
    A("v_lshrrev_b32 v%d, 5, v1" % (T + 2))
    A("v_lshl_add_u32 v%d, v%d, 8, v%d" % (T + 1, T + 2, T + 1))
    A("v_bfe_u32 v%d, v1, 3, 1" % (T + 2))
    A("v_lshl_add_u32 v%d, v%d, 7, v%d" % (T + 1, T + 2, T + 1))
    A("v_bfe_u32 v%d, v1, 4, 1" % (T + 2))
    A("v_lshlrev_b32 v%d, 1, v%d" % (T + 2, T + 2))
    A("v_bfe_u32 v%d, v1, 1, 1" % (T + 3))
    A("v_add_u32 v%d, v%d, v%d" % (T + 2, T + 2, T + 3))
    A("v_lshl_add_u32 v%d, v%d, 2, v%d" % (T + 2, T, T + 2))
    A("v_lshl_add_u32 v%d, v%d, 4, v%d" % (T + 1, T + 2, T + 1))
    A("v_and_b32 v%d, 1, v1" % (T + 2))
    A("v_lshl_add_u32 v%d, v%d, 3, v%d" % (T + 1, T + 2, T + 1))
    A("s_mul_i32 s63, s%d, 20480" % S_WV)
    A("v_add_u32 v%d, s63, v%d" % (SG_R0, T + 1))
    A("v_xor_b32 v%d, 64, v%d" % (SG_R1, SG_R0))
    A("s_lshl_b32 s%d, s%d, 14" % (S_SOFF, S_U0))

def stage_dma_lines(n):
    return ["s_add_u32 s48, s63, %d" % (STG + 2048 * (n % 10)),
            "s_mov_b32 m0, s48",
            "s_nop 0",
            "buffer_load_dwordx4 v%d, s[20:23], s%d offen lds" % (SG_E, S_SOFF),
            "buffer_load_dwordx4 v%d, s[20:23], s%d offen offset:1024 lds" % (SG_O, S_SOFF),
            "s_add_u32 s%d, s%d, 16384" % (S_SOFF, S_SOFF)]
def stage_dma(A, n):
    for l in stage_dma_lines(n): A(l)
def stage_read_lines(n):
    L = []
    for dt in range(2):
        for h in range(2):
            b = 8 * n + 4 * dt + 2 * h
            L.append("ds_read_b64_tr_b16 a[%d:%d], v%d offset:%d" % (b, b + 1, SG_R0 + dt, 2048 * (n % 10) + 512 * h))
    return L

CV_ACC = 208; CV_AA = 8; CV_BA = 9; CV_S0 = 144; CV_S1 = 64

def conv_reads(setb, r):
    def rdB(d): return ["ds_read_b128 v[%d:%d], v%d offset:%d" % (setb + 32 + 4 * d, setb + 32 + 4 * d + 3, CV_BA, 512 * (7 - d) + 64 * r)]
    def rdA(t): return ["ds_read_b64 v[%d:%d], v%d offset:%d" % (setb + 4 * t, setb + 4 * t + 1, CV_AA, 512 * t + 64 * r),
                        "ds_read_b64 v[%d:%d], v%d offset:%d" % (setb + 4 * t + 2, setb + 4 * t + 3, CV_AA, 512 * t + 64 * r + 8)]
    L = rdB(0)
    for t in range(8): L += rdA(t)
    for d in range(1, 8): L += rdB(d)
    return L

def conv_mfmas(setb):
    L = []
    for d in range(8):
        for j in range(d, 8):
            t = j - d
            L.append("v_mfma_f32_16x16x32_bf16 v[%d:%d], v[%d:%d], v[%d:%d], v[%d:%d]" % (
                CV_ACC + 4 * j, CV_ACC + 4 * j + 3, setb + 4 * t, setb + 4 * t + 3, setb + 32 + 4 * d, setb + 32 + 4 * d + 3, CV_ACC + 4 * j, CV_ACC + 4 * j + 3))
    return L

def conv(A):
    T = 10
    A("s_lshr_b32 s48, s%d, 1" % S_WV)
    A("s_and_b32 s49, s%d, 1" % S_WV)
    A("v_and_b32 v%d, 15, v1" % T)
    A("v_lshrrev_b32 v%d, 4, v1" % (T + 1))
    A("v_add_u32 v%d, 1, v%d" % (T + 2, T))
    A("v_and_b32 v%d, 3, v%d" % (T + 3, T + 2))
    A("v_mul_u32_u24 v%d, %d, v%d" % (T + 3, CS, T + 3))
    A("v_lshrrev_b32 v%d, 2, v%d" % (T + 2, T + 2))
    A("v_lshl_add_u32 v%d, v%d, 3, v%d" % (T + 3, T + 2, T + 3))
    A("v_lshl_add_u32 v%d, v%d, 4, v%d" % (T + 3, T + 1, T + 3))
    A("s_mul_i32 s50, s48, 16640")
    A("s_lshl_b32 s51, s49, 8")
    A("s_add_u32 s50, s50, s51")
    A("s_add_u32 s50, s50, %d" % TOEP)
    A("v_add_u32 v%d, s50, v%d" % (CV_AA, T + 3))
    A("s_mul_i32 s50, s48, 4608")
    A("s_add_u32 s50, s50, s51")
    A("s_add_u32 s50, s50, %d" % (UB + 480))
    A("v_lshlrev_b32 v%d, 5, v%d" % (T + 2, T))
    A("v_sub_u32 v%d, s50, v%d" % (T + 2, T + 2))
    A("v_lshl_add_u32 v%d, v%d, 4, v%d" % (CV_BA, T + 1, T + 2))
    A("s_lshl_b32 s50, s%d, 1" % S_CH0)
    A("s_add_u32 s52, s%d, s50" % P_D); A("s_addc_u32 s53, s%d, 0" % (P_D + 1))
    A("s_load_dword s%d, s[52:53], 0" % S_ST)
    for i in range(32): A("v_mov_b32 v%d, 0" % (CV_ACC + i))
    sets = [CV_S0, CV_S1]
    for l in conv_reads(sets[0], 0): A(l)
    wsched = [[11, 12, 13], [14, 15, 16], [17, 18, 19], [20, 21]]
    for r in range(4):
        A("s_waitcnt lgkmcnt(0)")
        if r == 2:
            A("s_waitcnt vmcnt(12)")
            A("s_barrier")
            flag_store(A, FL_H)
        if r == 3:
            A("s_and_b32 s49, s%d, 1" % S_J)
            A("s_lshl_b32 s48, s%d, 5" % S_XCD)
            A("s_add_u32 s48, s48, s49")
            A("v_lshlrev_b32 v2, 1, v1")
            A("v_add_u32 v2, s48, v2")
            A("v_lshlrev_b32 v2, 7, v2")
            A("v_add_u32 v2, 0x%x, v2" % (WS_FLAG + FL_H))
        mf = conv_mfmas(sets[r & 1])
        rd = conv_reads(sets[(r + 1) & 1], r + 1) if r < 3 else []
        side = []
        for p in wsched[r]: side += w_load_lines(p)
        n = len(mf); k = 0; j_ = 0
        for i, m in enumerate(mf):
            A(m)
            if k < len(rd): A(rd[k]); k += 1
            tgt = (len(side) * (i + 1)) // n
            while j_ < tgt: A(side[j_]); j_ += 1
        while k < len(rd): A(rd[k]); k += 1
        if r == 3:
            A("s_mov_b64 exec, 0xffff")
            A("global_load_dword v3, v2, s[%d:%d] %s" % (P_WS, P_WS + 1, SCL))
            A("s_mov_b64 exec, -1")
    stamp(A)
    A("s_waitcnt lgkmcnt(0)")
    A("s_barrier")
    A("s_lshl_b32 s50, s%d, 13" % S_WV)
    A("v_lshlrev_b32 v%d, 4, v1" % T)
    A("v_add_u32 v%d, s50, v%d" % (T + 4, T))
    for j in range(8):
        A("ds_write_b128 v%d, v[%d:%d] offset:%d" % (T + 4, CV_ACC + 4 * j, CV_ACC + 4 * j + 3, CVX + 1024 * j))
    A("s_waitcnt lgkmcnt(0)")
    A("s_barrier")
    A("s_lshl_b32 s55, s%d, 16" % S_ST)
    A("s_and_b32 s54, s%d, 0xffff0000" % S_ST)
    A("s_lshl_b32 s50, s%d, 11" % S_WV)
    A("v_add_u32 v%d, s50, v%d" % (T + 4, T))
    R = 64
    for jj in range(2):
        for w in range(4):
            b = R + 16 * jj + 4 * w
            A("ds_read_b128 v[%d:%d], v%d offset:%d" % (b, b + 3, T + 4, CVX + 8192 * w + 1024 * jj))
    A("v_and_b32 v%d, 15, v1" % (T + 5))
    A("v_lshrrev_b32 v%d, 4, v1" % (T + 6))
    A("v_lshlrev_b32 v%d, 5, v%d" % (T + 5, T + 5))
    A("v_lshl_add_u32 v%d, v%d, 3, v%d" % (T + 5, T + 6, T + 5))
    A("s_lshl_b32 s50, s%d, 10" % S_WV)
    A("s_sub_u32 s50, %d, s50" % (UB + 4088 - 512))
    A("v_sub_u32 v%d, s50, v%d" % (T + 5, T + 5))
    UU = 96
    for jj in range(2):
        for ch in range(2):
            b = UU + 4 * jj + 2 * ch
            A("ds_read_b64 v[%d:%d], v%d offset:%d" % (b, b + 1, T + 5, ch * 4608 + (512 if jj == 0 else 0)))
    A("s_waitcnt lgkmcnt(0)")
    UF = 104; O = 120
    for jj in range(2):
        for ch in range(2):
            b = R + 16 * jj + 8 * ch
            for i in range(4): A("v_add_f32 v%d, v%d, v%d" % (b + i, b + i, b + 4 + i))
            ub = UU + 4 * jj + 2 * ch
            A("v_and_b32 v%d, 0xffff0000, v%d" % (UF + 0, ub + 1))
            A("v_lshlrev_b32 v%d, 16, v%d" % (UF + 1, ub + 1))
            A("v_and_b32 v%d, 0xffff0000, v%d" % (UF + 2, ub))
            A("v_lshlrev_b32 v%d, 16, v%d" % (UF + 3, ub))
            for i in range(4): A("v_fmac_f32 v%d, s%d, v%d" % (b + i, 55 if ch == 0 else 54, UF + i))
        for i in range(4): A("v_cvt_pk_bf16_f32 v%d, v%d, v%d" % (O + 4 * jj + i, R + 16 * jj + i, R + 16 * jj + 8 + i))
    srd(A, 16, P_WS, 0x200000, WS_Y2)
    A("s_lshl_b32 s50, s%d, 12" % S_CH0)
    A("s_lshl_b32 s51, s%d, 11" % S_WV)
    A("s_add_u32 s50, s50, s51")
    A("v_and_b32 v%d, 15, v1" % (T + 5))
    A("v_lshrrev_b32 v%d, 4, v1" % (T + 6))
    A("v_lshlrev_b32 v%d, 6, v%d" % (T + 5, T + 5))
    A("v_lshl_add_u32 v%d, v%d, 4, v%d" % (T + 5, T + 6, T + 5))
    A("buffer_store_dwordx4 v[%d:%d], v%d, s[16:19], s50 offen %s" % (O, O + 3, T + 5, SC))
    A("buffer_store_dwordx4 v[%d:%d], v%d, s[16:19], s50 offen offset:1024 %s" % (O + 4, O + 7, T + 5, SC))

H_V = 64; ACC2 = 176

def h_load_lines(ul):
    L = ["s_add_u32 s51, s%d, s%d" % (S_U0, S_WPOS), "s_lshl_b32 s51, s51, 10"]
    for tt in range(2):
        b = H_V + 8 * ul + 4 * tt
        L.append("buffer_load_dwordx4 v[%d:%d], v6, s[%d:%d], s51 offen %s" % (b, b + 3, 16 + 4 * tt, 19 + 4 * tt, SCL))
        if tt == 0:
            L.append("s_add_u32 s%d, s%d, 1\ns_cmp_eq_u32 s%d, s%d\ns_cselect_b32 s%d, 0, s%d" % (S_WPOS, S_WPOS, S_WPOS, S_NU, S_WPOS, S_WPOS))
    return L

def gemm2_setup(A):
    for tt in range(2):
        d = 16 + 4 * tt
        A("s_lshl_b32 s48, s%d, 1" % S_TB64)
        A("s_add_u32 s48, s48, %d" % tt)
        A("s_mul_i32 s48, s48, %d" % (86 * 1024))
        A("s_add_u32 s48, s48, 0x%x" % WS_H)
        A("s_add_u32 s%d, s%d, s48" % (d, P_WS)); A("s_addc_u32 s%d, s%d, 0" % (d + 1, P_WS + 1))
        A("s_mov_b32 s%d, %d" % (d + 2, 86 * 1024)); A("s_mov_b32 s%d, 0x20000" % (d + 3))
    A("v_lshlrev_b32 v6, 4, v1")
    A("s_mov_b32 s%d, s%d" % (S_WPOS, S_ROT))

def gemm2(A):
    PD = 6
    gemm2_setup(A)
    for ul in range(PD):
        for l in h_load_lines(ul): A(l)
    for i in range(64): A("v_accvgpr_write_b32 a%d, 0" % (ACC2 + i))
    L = newlabel("g2")
    for ul in range(22):
        if ul == 20:
            A("s_cmp_eq_u32 s%d, 3" % S_WV); A("s_cbranch_scc1 %s" % L)
        rem = min(PD - 1, 21 - ul)
        A("s_waitcnt vmcnt(%d)" % (2 * rem))
        mf = []
        for dt in range(2):
            for tt in range(2):
                ac = ACC2 + 16 * (2 * dt + tt); w = 8 * ul + 4 * dt; h = H_V + 8 * ul + 4 * tt
                mf.append("v_mfma_f32_32x32x16_bf16 a[%d:%d], a[%d:%d], v[%d:%d], a[%d:%d]" % (ac, ac + 15, w, w + 3, h, h + 3, ac, ac + 15))
        weave(A, mf, h_load_lines(ul + PD) if ul + PD < 22 else [])
    A.label(L)

def final(A):
    T = 8
    A("v_and_b32 v40, 31, v1")
    A("v_mul_u32_u24 v40, 272, v40")
    A("v_lshrrev_b32 v41, 5, v1")
    A("v_lshl_add_u32 v40, v41, 4, v40")
    A("s_mul_i32 s48, s%d, 17408" % S_WV)
    A("v_add_u32 v40, s48, v40")
    A("s_nop 7")
    for dt in range(2):
        for tt in range(2):
            ac = ACC2 + 16 * (2 * dt + tt)
            for g in range(4):
                A("ds_write_b128 v40, a[%d:%d] offset:%d" % (ac + 4 * g, ac + 4 * g + 3, RED + tt * 32 * 272 + dt * 128 + g * 32))
    poll(A, FL_Y, S_CB, 32, 1)
    srd(A, 8, P_WS, 0x200000, WS_Y2)
    srd(A, 12, P_Q, 0x200000)
    srd(A, 16, P_WS, 2048 * 8, WS_ST)
    srd(A, 20, P_OUT, 0x200000)
    A("v_lshrrev_b32 v%d, 4, v0" % T)
    A("v_and_b32 v%d, 15, v0" % (T + 1))
    A("v_lshlrev_b32 v%d, 13, v%d" % (T + 2, T))
    A("v_lshl_add_u32 v%d, v%d, 4, v%d" % (T + 2, T + 1, T + 2))
    A("s_lshl_b32 s48, s%d, 18" % S_CB)
    A("s_lshl_b32 s49, s%d, 8" % S_TB64)
    A("s_add_u32 s48, s48, s49")
    A("s_add_u32 s49, s48, 0x20000")
    YR = 16
    A("buffer_load_dwordx4 v[%d:%d], v%d, s[8:11], s48 offen %s" % (YR, YR + 3, T + 2, SCL))
    A("buffer_load_dwordx4 v[%d:%d], v%d, s[8:11], s49 offen %s" % (YR + 4, YR + 7, T + 2, SCL))
    A("v_mul_u32_u24 v%d, 272, v%d" % (T + 3, T))
    A("v_lshl_add_u32 v%d, v%d, 4, v%d" % (T + 3, T + 1, T + 3))
    A("v_add_u32 v%d, %d, v%d" % (T + 3, YB, T + 3))
    A("v_lshrrev_b32 v%d, 3, v0" % (T + 4))
    A("v_and_b32 v%d, 7, v%d" % (T + 5, T + 4))
    A("v_lshlrev_b32 v%d, 2, v%d" % (T + 5, T + 5))
    A("v_lshrrev_b32 v%d, 3, v%d" % (T + 6, T + 4))
    A("v_add_u32 v%d, v%d, v%d" % (T + 5, T + 5, T + 6))
    A("v_and_b32 v%d, 7, v0" % (T + 6))
    A("v_lshlrev_b32 v7, 10, v%d" % (T + 5))
    A("v_lshl_add_u32 v7, v%d, 4, v7" % (T + 6))
    A("s_lshl_b32 s50, s%d, 16" % S_TB64)
    A("s_lshl_b32 s51, s%d, 7" % S_CB)
    A("s_add_u32 s50, s50, s51")
    A("s_add_u32 s51, s50, 0x8000")
    XR_ = 24; SV = 32
    A("buffer_load_dwordx4 v[%d:%d], v7, s[12:15], s50 offen" % (XR_, XR_ + 3))
    A("buffer_load_dwordx4 v[%d:%d], v7, s[12:15], s51 offen" % (XR_ + 4, XR_ + 7))
    A("v_lshlrev_b32 v6, 3, v%d" % (T + 5))
    A("s_lshl_b32 s52, s%d, 9" % S_TB64)
    A("buffer_load_dwordx2 v[%d:%d], v6, s[16:19], s52 offen %s" % (SV, SV + 1, SCL))
    A("buffer_load_dwordx2 v[%d:%d], v6, s[16:19], s52 offen offset:256 %s" % (SV + 2, SV + 3, SCL))
    A("s_waitcnt vmcnt(4)")
    A("ds_write_b128 v%d, v[%d:%d]" % (T + 3, YR, YR + 3))
    A("ds_write_b128 v%d, v[%d:%d] offset:%d" % (T + 3, YR + 4, YR + 7, 16 * 272))
    A("s_waitcnt lgkmcnt(0)")
    A("s_barrier")
    stamp(A)
    A("v_mul_u32_u24 v41, 272, v%d" % (T + 4))
    A("v_lshl_add_u32 v41, v%d, 5, v41" % (T + 6))
    A("v_mul_u32_u24 v42, %d, v%d" % (4 * 272, T + 6))
    A("v_lshl_add_u32 v42, v%d, 2, v42" % (T + 5))
    A("v_add_u32 v42, %d, v42" % YB)
    P = 64; YV = 44
    A("s_mov_b32 s54, 0xbfb8aa3b")
    for i in range(2):
        for w in range(4):
            for hlf in range(2):
                b = P + 32 * i + 8 * w + 4 * hlf
                A("ds_read_b128 v[%d:%d], v41 offset:%d" % (b, b + 3, RED + w * 17408 + i * 32 * 272 + 16 * hlf))
        for k in range(4):
            A("ds_read_b32 v%d, v42 offset:%d" % (YV + 4 * i + k, k * 272 + i * 128))
    A("s_waitcnt vmcnt(0) lgkmcnt(0)")
    E = 128; F = 136; G = 144; O = 152; B2 = 160
    def pk(op, d, a, b, c=None, mod=""):
        if c is None: A("%s v[%d:%d], v[%d:%d], v[%d:%d] %s" % (op, d, d + 1, a, a + 1, b, b + 1, mod))
        else: A("%s v[%d:%d], v[%d:%d], v[%d:%d], v[%d:%d] %s" % (op, d, d + 1, a, a + 1, b, b + 1, c, c + 1, mod))
    for i in range(2):
        b = P + 32 * i
        A("v_mov_b32 v%d, v%d" % (B2, SV + 2 * i)); A("v_mov_b32 v%d, v%d" % (B2 + 1, SV + 2 * i))
        A("v_mov_b32 v%d, v%d" % (B2 + 2, SV + 2 * i + 1)); A("v_mov_b32 v%d, v%d" % (B2 + 3, SV + 2 * i + 1))
        for e in range(0, 8, 2):
            pk("v_pk_add_f32", b + e, b + e, b + 8 + e)
            pk("v_pk_add_f32", b + 16 + e, b + 16 + e, b + 24 + e)
        for e in range(0, 8, 2): pk("v_pk_add_f32", b + e, b + e, b + 16 + e)
        for e in range(0, 8, 2): pk("v_pk_mul_f32", b + e, b + e, B2 + 2)
        for e in range(8): A("v_mul_f32 v%d, s54, v%d" % (E + e, b + e))
        for e in range(8): A("v_exp_f32 v%d, v%d" % (E + e, E + e))
        unpack(A, F, YV + 4 * i, 4)
        for e in range(8): A("v_add_f32 v%d, 1.0, v%d" % (E + e, E + e))
        for e in range(8): A("v_rcp_f32 v%d, v%d" % (E + e, E + e))
        unpack(A, G, XR_ + 4 * i, 4)
        for e in range(0, 8, 2): pk("v_pk_mul_f32", F + e, F + e, B2 + 2)
        for e in range(0, 8, 2): pk("v_pk_mul_f32", b + e, b + e, E + e)
        for e in range(0, 8, 2): pk("v_pk_add_f32", E + e, G + e, B2, None, "neg_lo:[0,1] neg_hi:[0,1]")
        for e in range(0, 8, 2): pk("v_pk_mul_f32", F + e, F + e, E + e)
        for e in range(0, 8, 2): pk("v_pk_fma_f32", G + e, F + e, b + e, G + e)
        for e in range(4): A("v_cvt_pk_bf16_f32 v%d, v%d, v%d" % (O + 4 * i + e, G + 2 * e, G + 2 * e + 1))
        A("buffer_store_dwordx4 v[%d:%d], v7, s[20:23], s%d offen" % (O + 4 * i, O + 4 * i + 3, 50 + i))

def epoch_update(A):
    L = newlabel("ep")
    A("s_cmp_lg_u32 s2, 0"); A("s_cbranch_scc1 %s" % L)
    A("s_cmp_lg_u32 s%d, 0" % S_WV); A("s_cbranch_scc1 %s" % L)
    A("s_mov_b32 s54, 0")
    poll(A, FL_Y, 54, 8, 32)
    A("s_add_u32 s48, s%d, 1" % S_E)
    A("v_mov_b32 v3, s48")
    A("v_mov_b32 v2, 0x%x" % WS_FLAG)
    A("s_mov_b64 exec, 1")
    A("global_store_dword v2, v3, s[%d:%d] %s" % (P_WS, P_WS + 1, SC))
    A.label(L)

def prof_store(A):
    if not cfg.prof: return
    stamp(A)
    A("s_memtime s[100:101]")
    n = NST[0]
    A("s_waitcnt lgkmcnt(0)")
    A("s_cmp_lg_u32 s%d, 0" % S_WV); A("s_cbranch_scc1 L_end")
    A("s_lshl_b32 s48, s2, 7")
    A("s_add_u32 s48, s48, 0x%x" % WS_PROF)
    A("s_add_u32 s50, s%d, s48" % P_WS); A("s_addc_u32 s51, s%d, 0" % (P_WS + 1))
    A("v_mov_b32 v2, 0")
    A("s_mov_b64 exec, 1")
    for i in range(n):
        A("v_mov_b32 v3, s%d" % (72 + 2 * i))
        A("global_store_dword v2, v3, s[50:51] offset:%d" % (4 * i))
        A("s_nop 1")
    A("v_mov_b32 v3, %d" % n)
    A("global_store_dword v2, v3, s[50:51] offset:124")
    A("s_sub_u32 s48, s100, s98")
    A("v_mov_b32 v4, s48")
    A("global_store_dword v2, v4, s[50:51] offset:120")
    A("s_mov_b64 exec, 0xffff")
    A("v_accvgpr_read_b32 v5, a255")
    A("v_lshlrev_b32 v6, 2, v1")
    A("s_lshl_b32 s48, s2, 6")
    A("s_add_u32 s48, s48, 0x%x" % (WS_PROF + 0x20000))
    A("v_add_u32 v6, s48, v6")
    A("global_store_dword v6, v5, s[%d:%d]" % (P_WS, P_WS + 1))
    A("s_mov_b64 exec, 1")
    if cfg.dbgstamps:
        A("s_cmp_lg_u32 s2, 0"); A("s_cbranch_scc1 L_end")
        for i in range(n):
            A("s_sub_u32 s48, s%d, s72" % (72 + 2 * i))
            A("v_mov_b32 v3, s48")
            A("global_store_dword v2, v3, s[%d:%d] offset:%d" % (P_DBG, P_DBG + 1, 4 * i))
            A("s_nop 1")

def build():
    A = Asm(); name = KN + "_kernel"
    NST[0] = 0
    prologue(A, name)
    prep_issue(A)
    prep_compute(A)
    stamp(A)
    gemm1(A)
    stamp(A)
    conv(A)
    stamp(A)
    A("s_waitcnt vmcnt(0)")
    Lok = newlabel("hok")
    A("s_mov_b64 exec, 0xffff")
    A("v_cmp_ne_u32 vcc, s%d, v3" % S_NONCE)
    A("s_mov_b64 exec, -1")
    A("s_cbranch_vccz %s" % Lok)
    A("s_and_b32 s54, s%d, 1" % S_J)
    poll(A, FL_H, S_XCD, 16, 2, 54)
    A.label(Lok)
    A("s_barrier")
    flag_store(A, FL_Y)
    stamp(A)
    gemm2(A)
    stamp(A)
    A("s_barrier")
    final(A)
    epoch_update(A)
    prof_store(A)
    A.label("L_end")
    A("s_endpgm")
    lines, added, probs = pad_hazards(A.lines)
    hdr = ["; H3 long-conv + gated MLP, single persistent launch (generated by a hand-written generator script)",
           "; @launch grid=(256,1,1) block=(256,1,1) lds=%d" % LDS_TOTAL,
           '.amdgcn_target "amdgcn-amd-amdhsa--gfx950"', ".text"]
    desc = ['.section .rodata,"a"', ".p2align 6", ".amdhsa_kernel %s" % name,
            "  .amdhsa_next_free_vgpr 512", "  .amdhsa_next_free_sgpr 102", "  .amdhsa_accum_offset 256",
            "  .amdhsa_group_segment_fixed_size 0", "  .amdhsa_kernarg_size 96", "  .amdhsa_user_sgpr_count 2",
            "  .amdhsa_user_sgpr_kernarg_segment_ptr 1", "  .amdhsa_system_sgpr_workgroup_id_x 1",
            "  .amdhsa_float_denorm_mode_32 3", "  .amdhsa_float_denorm_mode_16_64 3", ".end_amdhsa_kernel"]
    return "\n".join(hdr + lines + desc) + "\n"

if __name__ == "__main__":
    out = sys.argv[1]
    for a_ in sys.argv[2:]:
        if a_ == "prof": cfg.prof = True
        if a_ == "dbg": cfg.prof = True; cfg.dbgstamps = True
        if a_ == "notouch": cfg.touch = False
        if a_ == "lprof": cfg.lprof = True
        if a_ == "cyc": cfg.cyc = True
    open(out, "w").write(build()); print("wrote", out)
```

```python
import sys
from asmlib import *

KN = "recurrent_scan__ssm_conv_h3__dense_activation_relu__prompt"
WS_ST = 0x000000; WS_KVT = 0x200000; WS_H = 0x400000; WS_Y2 = 0xA00000
WS_FLAG = 0xC00000; WS_PROF = 0xD00000; WS_W2F = 0xE00000
FL_P = 0x1000; FL_H = 0x9000; FL_Y = 0x11000

S_WV = 3; S_XCD = 4; S_J = 5; S_CL = 6; S_MEM = 7
P_Q, P_K, P_V, P_SK, P_SSMK, P_D, P_BX, P_W1 = 24, 26, 28, 30, 32, 34, 36, 38
P_W2, P_OUT, P_DBG, P_WS = 40, 42, 44, 46
S_ROT = 57; S_CH0 = 58; S_UNIT0 = 59; S_NONCE = 60; S_E = 61; S_WPOS = 62; S_NU = 63
S_W2U = 64; S_TB64 = 65; S_CB = 66; S_U0 = 67
S_ST = 68; S_XS = 69; S_WS_ = 70; S_DV = 71
S_ROW = 56

NSLOT = 4
XR = 0; WR = NSLOT * 16384
TOEP = NSLOT * 28672; CS = 4160
UB = TOEP + 33280
KVT_T = UB
CSB = UB + 9216
LDS_TOTAL = CSB + 3072
W2S = 49152
CVX = 0; RED = 0; YB = 69632

class Cfg:
    prof = False; dbgstamps = False; lprof = False; cyc = False
    wtail = [10, 0, 0, 0, 0, 0]; wepi = 2; hpre = 10; outsc = ""; per2 = 5; hpub = 1; wr3 = True; krot = True; wrotx = 0
cfg = Cfg()
NST = [0]
SC = "sc0 sc1"; SCL = "sc1"
_lbl = [0]
def newlabel(p):
    _lbl[0] += 1
    return "L_%s_%d" % (p, _lbl[0])

class G(Asm):
    def __init__(self):
        super().__init__(); self.vm = []
    def vmop(self, line, tag, certain=True):
        self(line)
        if certain: self.vm.append(tag)
    def tag(self, tag, n=1):
        self.vm += [tag] * n
    def cnt(self, tag):
        idx = max(i for i, t in enumerate(self.vm) if t == tag)
        return len(self.vm) - 1 - idx
    def wait(self, tag, lgkm=None):
        c = min(63, self.cnt(tag))
        self("s_waitcnt vmcnt(%d)%s" % (c, "" if lgkm is None else " lgkmcnt(%d)" % lgkm))

class Sub(Asm):
    def ins(self): return [l.strip() for l in self.lines]

class V:
    def __init__(self, text, tag=None, n=0): self.text = text; self.tag = tag; self.n = n
def emit(A, x):
    if isinstance(x, V):
        A(x.text)
        if x.tag: A.tag(x.tag, x.n)
    else: A(x)

def stamp(A):
    if not cfg.prof: return
    i = NST[0]; NST[0] += 1
    assert i < 12, "too many stamps"
    A("%s s[%d:%d]" % ("s_memtime" if cfg.cyc else "s_memrealtime", 72 + 2 * i, 73 + 2 * i))

def srd(A, d, ptr, nbytes, off=0):
    if off:
        A("s_add_u32 s%d, s%d, 0x%x" % (d, ptr, off)); A("s_addc_u32 s%d, s%d, 0" % (d + 1, ptr + 1))
    else:
        A("s_mov_b32 s%d, s%d" % (d, ptr)); A("s_mov_b32 s%d, s%d" % (d + 1, ptr + 1))
    A("s_mov_b32 s%d, 0x%x" % (d + 2, nbytes)); A("s_mov_b32 s%d, 0x20000" % (d + 3))
def srd_s(A, d, soff, nbytes, base=P_WS):
    A("s_add_u32 s%d, s%d, s%d" % (d, base, soff)); A("s_addc_u32 s%d, s%d, 0" % (d + 1, base + 1))
    A("s_mov_b32 s%d, 0x%x" % (d + 2, nbytes)); A("s_mov_b32 s%d, 0x20000" % (d + 3))

def unpack(A, dst, src, n):
    for i in range(n):
        A("v_lshlrev_b32 v%d, 16, v%d" % (dst + 2 * i, src + i))
        A("v_and_b32 v%d, 0xffff0000, v%d" % (dst + 2 * i + 1, src + i))
def bf16_round(A, dst, src):
    A("v_cvt_pk_bf16_f32 v%d, v%d, v%d" % (dst, src, src))
    A("v_and_b32 v%d, 0xffff0000, v%d" % (dst, dst))
def pk(A, op, d, a, b, c=None, mod=""):
    if c is None: A("%s v[%d:%d], v[%d:%d], v[%d:%d] %s" % (op, d, d + 1, a, a + 1, b, b + 1, mod))
    else: A("%s v[%d:%d], v[%d:%d], v[%d:%d], v[%d:%d] %s" % (op, d, d + 1, a, a + 1, b, b + 1, c, c + 1, mod))
NEG1 = "neg_lo:[0,1] neg_hi:[0,1]"
def wave_reduce(A, vs, sdst):
    steps = ["row_shr:1 row_mask:0xf bank_mask:0xf bound_ctrl:0", "row_shr:2 row_mask:0xf bank_mask:0xf bound_ctrl:0",
             "row_shr:4 row_mask:0xf bank_mask:0xf bound_ctrl:0", "row_shr:8 row_mask:0xf bank_mask:0xf bound_ctrl:0",
             "row_bcast:15 row_mask:0xa bank_mask:0xf", "row_bcast:31 row_mask:0xc bank_mask:0xf"]
    for st in steps:
        for r in vs: A("v_add_f32_dpp v%d, v%d, v%d %s" % (r, r, r, st))
    for r, d in zip(vs, sdst): A("v_readlane_b32 s%d, v%d, 63" % (d, r))

def spread(A, main, side):
    n = len(main); m = len(side); k = 0
    for i, l in enumerate(main):
        emit(A, l)
        tgt = (m * (i + 1)) // n
        while k < tgt: emit(A, side[k]); k += 1
    while k < m: emit(A, side[k]); k += 1

def weave2(A, mf, rd, side, per=3):
    n = len(mf); k = 0; j = 0
    for i, m in enumerate(mf):
        A(m)
        for _ in range(per):
            if k < len(rd): emit(A, rd[k]); k += 1
        tgt = (len(side) * (i + 1)) // n
        while j < tgt: emit(A, side[j]); j += 1
    while k < len(rd): emit(A, rd[k]); k += 1
    while j < len(side): emit(A, side[j]); j += 1

def flag_store(A, fl_off):
    L = newlabel("pub")
    A("s_cmp_lg_u32 s%d, 0" % S_WV)
    A("s_cbranch_scc1 %s" % L)
    A("s_lshl_b32 s48, s%d, 5" % S_XCD)
    A("s_add_u32 s48, s48, s%d" % S_J)
    A("s_lshl_b32 s48, s48, 7")
    A("s_add_u32 s48, s48, 0x%x" % (WS_FLAG + fl_off))
    A("v_mov_b32 v2, s48")
    A("v_mov_b32 v3, s%d" % S_NONCE)
    A("s_mov_b64 exec, 1")
    A("global_store_dword v2, v3, s[%d:%d] %s" % (P_WS, P_WS + 1, SC))
    A("s_mov_b64 exec, -1")
    A.label(L)

def poll_addr(A, va, fl_off, grp_sreg, stride=1, first_sreg=None):
    A("s_lshl_b32 s48, s%d, 5" % grp_sreg)
    if first_sreg is not None: A("s_add_u32 s48, s48, s%d" % first_sreg)
    if stride == 1: A("v_add_u32 v%d, s48, v1" % va)
    else:
        A("v_mul_u32_u24 v%d, %d, v1" % (va, stride)); A("v_add_u32 v%d, s48, v%d" % (va, va))
    A("v_lshlrev_b32 v%d, 7, v%d" % (va, va))
    A("v_add_u32 v%d, 0x%x, v%d" % (va, WS_FLAG + fl_off, va))
def poll_issue(A, va, vd, nlanes, tag):
    A("s_mov_b64 exec, 0x%x" % ((1 << nlanes) - 1))
    A.vmop("global_load_dword v%d, v%d, s[%d:%d] %s" % (vd, va, P_WS, P_WS + 1, SCL), tag)
    A("s_mov_b64 exec, -1")
def poll_check(A, va, vd, nlanes):
    L = newlabel("poll"); D = newlabel("polld")
    A("s_mov_b64 exec, 0x%x" % ((1 << nlanes) - 1))
    A("v_cmp_ne_u32 vcc, s%d, v%d" % (S_NONCE, vd))
    A("s_mov_b32 s55, 0")
    A("s_cbranch_vccz %s" % D)
    A.label(L)
    A("s_sleep 1")
    A("global_load_dword v%d, v%d, s[%d:%d] %s" % (vd, va, P_WS, P_WS + 1, SCL))
    A("s_waitcnt vmcnt(0)")
    A("v_cmp_ne_u32 vcc, s%d, v%d" % (S_NONCE, vd))
    A("s_add_u32 s55, s55, 1")
    A("s_cbranch_vccz %s" % D)
    A("s_cmp_lt_u32 s55, 200000")
    A("s_cbranch_scc1 %s" % L)
    A.label(D)
    A("s_mov_b64 exec, -1")

KR = 16; VR = 30; WR_ = 38; X0 = 48; X1 = 52; VCQ = 56; VRQ = 57; VXO = 58
G1_ACC = 16; G1_SET = [64, 96]
G1_XA = 128; G1_WA = 132; G1_XE, G1_XO, G1_WM = 136, 137, 138
WLA = 143; G1_ONES = 144; UL = 148; UA = 156; STV = 14; PB = 160
TPH = 240; TPA = 252
CV_AA = 8; CV_BA = 9
CSA = 176
FN_YG, FN_YL, FN_XO, FN_ST, FN_RD, FN_YR = 4, 5, 7, 6, 10, 11
FN_RW = 12

def prologue(A, name):
    A.raw(".globl %s" % name); A.raw(".p2align 8"); A.raw(".type %s,@function" % name)
    A.label(name)
    A("s_cmp_ge_u32 s2, 256")
    A("s_cbranch_scc1 L_end")
    A("s_load_dwordx16 s[24:39], s[0:1], 0")
    A("s_load_dwordx8 s[40:47], s[0:1], 64")
    stamp(A)
    if cfg.prof: A("s_memtime s[98:99]")
    A("v_lshrrev_b32 v1, 6, v0")
    A("s_and_b32 s%d, s2, 7" % S_XCD)
    A("s_lshr_b32 s%d, s2, 3" % S_J)
    A("v_readfirstlane_b32 s%d, v1" % S_WV)
    A("v_and_b32 v1, 63, v0")
    A("s_and_b32 s%d, s%d, 1" % (S_CL, S_J))
    A("s_lshl_b32 s48, s%d, 1" % S_XCD)
    A("s_add_u32 s%d, s%d, s48" % (S_CL, S_CL))
    A("s_lshr_b32 s%d, s%d, 1" % (S_MEM, S_J))
    A("s_lshl_b32 s48, s%d, 6" % S_XCD)
    A("s_lshl_b32 s49, s%d, 1" % S_J)
    A("s_add_u32 s%d, s48, s49" % S_CH0)
    A("v_and_b32 v%d, 15, v0" % VCQ)
    A("v_lshrrev_b32 v%d, 4, v0" % VRQ)
    A("s_lshl_b32 s51, s%d, 6" % S_J)
    A("v_lshlrev_b32 v60, 2, v%d" % VRQ)
    A("v_add_u32 v60, s51, v60")
    A("v_lshlrev_b32 v60, 10, v60")
    A("v_lshl_add_u32 v60, v%d, 3, v60" % VCQ)
    A("s_lshl_b32 s52, s%d, 7" % S_XCD)
    A("v_add_u32 v60, s52, v60")
    for r in range(7):
        if r != 3: A("v_add_u32 v%d, %d, v60" % (61 + r, ((r - 3) * 1024) & 0xffffffff))
    A("v_lshlrev_b32 v%d, 4, v1" % VXO)
    A("s_lshl_b32 s48, s%d, 7" % S_CL)
    A("s_lshl_b32 s49, s%d, 3" % S_MEM)
    A("s_add_u32 s48, s48, s49")
    A("s_lshl_b32 s49, s%d, 1" % S_WV)
    A("s_add_u32 s%d, s48, s49" % S_ROW)
    A("s_lshl_b32 s50, s%d, 10" % S_ROW)
    A("v_lshlrev_b32 v68, 5, v%d" % VCQ)
    A("s_lshl_b32 s53, s%d, 9" % S_XCD)
    A("s_waitcnt lgkmcnt(0)")
    srd(A, 12, P_K, 0x200000); srd(A, 16, P_V, 0x200000)
    for r in range(7):
        A.vmop("buffer_load_dwordx2 v[%d:%d], v%d, s[12:15], 0 offen" % (KR + 2 * r, KR + 2 * r + 1, 60 if r == 3 else 61 + r), "kv")
    srd(A, 20, P_SK, 4096)
    for r in range(4):
        A.vmop("buffer_load_dwordx2 v[%d:%d], v60, s[16:19], 0 offen offset:%d" % (VR + 2 * r, VR + 2 * r + 1, 1024 * r), "kv")
    srd(A, 8, P_Q, 0x200000)
    A.vmop("buffer_load_dwordx4 v[%d:%d], v68, s[20:23], s53 offen" % (WR_, WR_ + 3), "kv")
    A.vmop("buffer_load_dwordx4 v[%d:%d], v68, s[20:23], s53 offen offset:16" % (WR_ + 4, WR_ + 7), "kv")
    A.vmop("buffer_load_dwordx4 v[%d:%d], v%d, s[8:11], s50 offen" % (X0, X0 + 3, VXO), "x")
    A.vmop("buffer_load_dwordx4 v[%d:%d], v%d, s[8:11], s50 offen offset:1024" % (X1, X1 + 3, VXO), "x")
    A("s_mul_i32 s%d, s%d, 3" % (S_UNIT0, S_MEM))
    A("s_lshl_b32 s48, s%d, 1" % S_MEM)
    A("s_add_u32 s48, s48, 11")
    A("s_cmp_lt_u32 s%d, 11" % S_MEM)
    A("s_cselect_b32 s%d, s%d, s48" % (S_UNIT0, S_UNIT0))
    A("s_and_b32 s%d, s%d, 1" % (S_TB64, S_MEM))
    A("s_lshl_b32 s48, s%d, 1" % S_CL)
    A("s_add_u32 s%d, s%d, s48" % (S_TB64, S_TB64))
    A("s_lshr_b32 s%d, s%d, 1" % (S_CB, S_MEM))
    A("s_mul_i32 s%d, s%d, 22" % (S_U0, S_WV))
    A("s_and_b32 s48, s%d, 1" % S_J)
    A("s_lshl_b32 s48, s48, 1")
    A("s_and_b32 s49, s%d, 1" % S_MEM)
    A("s_add_u32 s48, s48, s49")
    A("s_mul_i32 s48, s48, 5")
    A("s_mul_i32 s49, s%d, 3" % S_CB)
    A("s_add_u32 s48, s48, s49")
    if cfg.wrotx:
        A("s_mul_i32 s49, s%d, %d" % (S_XCD, cfg.wrotx))
        A("s_add_u32 s48, s48, s49")
    for _ in range(3 if cfg.wrotx else 1):
        A("s_sub_u32 s49, s48, 20")
        A("s_cmp_ge_u32 s48, 20")
        A("s_cselect_b32 s48, s49, s48")
    A("s_mov_b32 s%d, s48" % S_ROT)
    A("s_cmp_eq_u32 s%d, 3" % S_WV)
    A("s_cselect_b32 s%d, 20, 22" % S_NU)
    srd(A, 20, P_W2, 1376 * 512 * 2)
    A("v_lshrrev_b32 v70, 3, v1")
    A("v_lshlrev_b32 v70, 11, v70")
    A("v_and_b32 v71, 7, v1")
    A("v_lshl_add_u32 v70, v71, 4, v70")
    A("s_lshl_b32 s48, s%d, 7" % S_XCD)
    A("v_add_u32 v70, s48, v70")
    A("v_xor_b32 v71, 64, v70")
    A("s_lshl_b32 s48, s%d, 5" % S_WV)
    A("s_add_u32 s%d, s48, s%d" % (S_W2U, S_J))
    A("s_lshl_b32 s49, s%d, 14" % S_W2U)
    A("s_lshl_b32 s48, s%d, 11" % S_WV)
    A("s_add_u32 s48, s48, %d" % W2S)
    A("s_mov_b32 m0, s48")
    A("s_nop 0")
    A.vmop("buffer_load_dwordx4 v70, s[20:23], s49 offen lds", "w2u")
    A.vmop("buffer_load_dwordx4 v71, s[20:23], s49 offen offset:1024 lds", "w2u")
    A("v_lshlrev_b32 v%d, 4, v0" % TPA)
    toep_loads(A)
    A("s_add_u32 s48, s%d, 0x%x" % (P_WS, WS_FLAG)); A("s_addc_u32 s49, s%d, 0" % (P_WS + 1))
    A("s_load_dword s%d, s[48:49], 0" % S_E)
    A("s_lshl_b32 s50, s%d, 1" % S_CH0)
    A("s_add_u32 s52, s%d, s50" % P_D); A("s_addc_u32 s53, s%d, 0" % (P_D + 1))
    A("s_load_dword s%d, s[52:53], 0" % S_DV)

def addr_setup(A):
    T = 72
    srd(A, 16, P_Q, 0x200000)
    srd(A, 20, P_W1, 512 * 1376 * 2)
    A("v_lshrrev_b32 v%d, 3, v1" % T)
    A("v_and_b32 v%d, 7, v1" % (T + 1))
    A("v_lshrrev_b32 v%d, 1, v%d" % (T + 2, T))
    A("v_xor_b32 v%d, v%d, v%d" % (T + 1, T + 1, T + 2))
    A("s_lshl_b32 s48, s%d, 7" % S_CL)
    A("s_lshl_b32 s49, s%d, 5" % S_WV)
    A("s_add_u32 s48, s48, s49")
    A("v_lshlrev_b32 v%d, 2, v%d" % (T, T))
    A("v_add_u32 v%d, s48, v%d" % (T, T))
    A("v_lshlrev_b32 v%d, 10, v%d" % (T, T))
    A("v_lshl_add_u32 v%d, v%d, 4, v%d" % (G1_XE, T + 1, T))
    A("v_xor_b32 v%d, 64, v%d" % (G1_XO, G1_XE))
    A("s_mul_i32 s48, s%d, 192" % S_WV)
    A("s_lshl_b32 s49, s%d, 6" % S_UNIT0)
    A("s_mov_b32 s54, 43691")
    for m in range(3):
        A("v_add_u32 v%d, s48, v1" % T)
        if m: A("v_add_u32 v%d, %d, v%d" % (T, 64 * m, T))
        A("v_mul_lo_u32 v%d, v%d, s54" % (T + 1, T))
        A("v_lshrrev_b32 v%d, 19, v%d" % (T + 1, T + 1))
        A("v_mul_u32_u24 v%d, 12, v%d" % (T + 2, T + 1))
        A("v_sub_u32 v%d, v%d, v%d" % (T + 2, T, T + 2))
        A("v_mul_u32_u24 v%d, 2752, v%d" % (T + 1, T + 1))
        A("v_lshl_add_u32 v%d, v%d, 4, v%d" % (T + 1, T + 2, T + 1))
        A("v_add_u32 v%d, s49, v%d" % (T + 1, T + 1))
        if m: A("v_subrev_u32 v%d, %d, v%d" % (G1_WM + m, 1024 * m, T + 1))
        else: A("v_mov_b32 v%d, v%d" % (G1_WM, T + 1))
    A("s_mov_b32 s%d, 0" % S_ST); A("s_mov_b32 s%d, 0" % S_XS); A("s_mov_b32 s%d, 0" % S_WS_)

def addr_setup2(A):
    T = 72
    A("v_and_b32 v%d, 31, v1" % T)
    A("v_lshrrev_b32 v%d, 5, v1" % (T + 1))
    A("v_bfe_u32 v%d, v1, 1, 3" % (T + 2))
    A("v_xor_b32 v%d, v%d, v%d" % (T + 2, T + 2, T + 1))
    A("s_lshl_b32 s48, s%d, 12" % S_WV)
    A("v_lshlrev_b32 v%d, 7, v%d" % (T, T))
    A("v_add_u32 v%d, s48, v%d" % (T, T))
    A("v_bfe_u32 v%d, v1, 2, 2" % (T + 4))
    A("v_lshl_add_u32 v%d, v%d, 3, v%d" % (T + 4, T + 1, T + 4))
    A("v_mul_u32_u24 v%d, 192, v%d" % (T + 4, T + 4))
    A("v_bfe_u32 v%d, v1, 4, 1" % (T + 5))
    A("v_lshl_add_u32 v%d, v%d, 5, v%d" % (T + 4, T + 5, T + 4))
    A("v_and_b32 v%d, 3, v1" % (T + 5))
    A("v_lshl_add_u32 v%d, v%d, 3, v%d" % (T + 4, T + 5, T + 4))
    A("v_add_u32 v%d, %d, v%d" % (T + 4, WR, T + 4))
    for p in range(4):
        A("s_add_u32 s48, s%d, %d" % (S_WV, p))
        A("s_and_b32 s48, s48, 3")
        A("s_lshl_b32 s49, s48, 1")
        A("v_xor_b32 v%d, s49, v%d" % (T + 3, T + 2))
        A("v_lshl_add_u32 v%d, v%d, 4, v%d" % (G1_XA + p, T + 3, T))
        A("s_mul_i32 s49, s48, 3072")
        A("v_add_u32 v%d, s49, v%d" % (G1_WA + p, T + 4))
    for i in range(4): A("v_mov_b32 v%d, 0x3f803f80" % (G1_ONES + i))
    A("v_lshlrev_b32 v%d, 4, v1" % WLA)
    A("v_lshlrev_b32 v%d, 4, v0" % UA)
    A("s_lshr_b32 s48, s%d, 1" % S_WV)
    A("s_and_b32 s49, s%d, 1" % S_WV)
    A("v_and_b32 v%d, 15, v1" % T)
    A("v_lshrrev_b32 v%d, 4, v1" % (T + 1))
    A("v_add_u32 v%d, 1, v%d" % (T + 2, T))
    A("v_and_b32 v%d, 3, v%d" % (T + 3, T + 2))
    A("v_mul_u32_u24 v%d, %d, v%d" % (T + 3, CS, T + 3))
    A("v_lshrrev_b32 v%d, 2, v%d" % (T + 2, T + 2))
    A("v_lshl_add_u32 v%d, v%d, 3, v%d" % (T + 3, T + 2, T + 3))
    A("v_lshl_add_u32 v%d, v%d, 4, v%d" % (T + 3, T + 1, T + 3))
    A("s_mul_i32 s50, s48, 16640")
    A("s_lshl_b32 s51, s49, 8")
    A("s_add_u32 s50, s50, s51")
    A("s_add_u32 s50, s50, %d" % TOEP)
    A("v_add_u32 v%d, s50, v%d" % (CV_AA, T + 3))
    A("s_mul_i32 s50, s48, 4608")
    A("s_add_u32 s50, s50, s51")
    A("s_add_u32 s50, s50, %d" % (UB + 480))
    A("v_lshlrev_b32 v%d, 5, v%d" % (T + 2, T))
    A("v_sub_u32 v%d, s50, v%d" % (T + 2, T + 2))
    A("v_lshl_add_u32 v%d, v%d, 4, v%d" % (CV_BA, T + 1, T + 2))
    A("v_lshrrev_b32 v%d, 4, v0" % T)
    A("v_and_b32 v%d, 15, v0" % (T + 1))
    A("v_lshlrev_b32 v%d, 13, v%d" % (FN_YG, T))
    A("v_lshl_add_u32 v%d, v%d, 4, v%d" % (FN_YG, T + 1, FN_YG))
    A("v_mul_u32_u24 v%d, 272, v%d" % (FN_YL, T))
    A("v_lshl_add_u32 v%d, v%d, 4, v%d" % (FN_YL, T + 1, FN_YL))
    A("v_add_u32 v%d, %d, v%d" % (FN_YL, YB, FN_YL))
    A("v_lshrrev_b32 v%d, 3, v0" % T)
    A("v_and_b32 v%d, 7, v%d" % (T + 1, T))
    A("v_lshlrev_b32 v%d, 2, v%d" % (T + 1, T + 1))
    A("v_lshrrev_b32 v%d, 3, v%d" % (T + 2, T))
    A("v_add_u32 v%d, v%d, v%d" % (T + 1, T + 1, T + 2))
    A("v_and_b32 v%d, 7, v0" % (T + 2))
    A("v_lshlrev_b32 v%d, 10, v%d" % (FN_XO, T + 1))
    A("v_lshl_add_u32 v%d, v%d, 4, v%d" % (FN_XO, T + 2, FN_XO))
    A("v_lshlrev_b32 v%d, 3, v%d" % (FN_ST, T + 1))
    A("v_mul_u32_u24 v%d, 272, v%d" % (FN_RD, T))
    A("v_lshl_add_u32 v%d, v%d, 5, v%d" % (FN_RD, T + 2, FN_RD))
    A("v_mul_u32_u24 v%d, %d, v%d" % (FN_YR, 4 * 272, T + 2))
    A("v_lshl_add_u32 v%d, v%d, 2, v%d" % (FN_YR, T + 1, FN_YR))
    A("v_add_u32 v%d, %d, v%d" % (FN_YR, YB, FN_YR))
    A("v_and_b32 v%d, 31, v1" % T)
    A("v_mul_u32_u24 v%d, 272, v%d" % (T, T))
    A("v_lshrrev_b32 v%d, 5, v1" % (T + 1))
    A("v_lshl_add_u32 v%d, v%d, 4, v%d" % (T, T + 1, T))
    A("s_mul_i32 s48, s%d, 17408" % S_WV)
    A("v_add_u32 v%d, s48, v%d" % (FN_RW, T))

def g1_dma(stage):
    slot = stage % NSLOT
    if cfg.krot:
        sl = "s_add_u32 s49, s%d, %d\ns_and_b32 s49, s49, 7\n" % (S_XCD, stage)
        xo = sl + "s_lshl_b32 s49, s49, 7"; wo = sl + "s_mul_i32 s49, s49, 176128"
    else:
        xo = "s_movk_i32 s49, %d" % (128 * stage); wo = "s_mov_b32 s49, %d" % (176128 * stage)
    x = ["s_lshl_b32 s48, s%d, 12" % S_WV, "s_add_u32 s48, s48, %d" % (XR + slot * 16384), "s_mov_b32 m0, s48", xo]
    for i in range(4):
        x.append(V("buffer_load_dwordx4 v%d, s[16:19], s49 offen offset:%d lds" % (G1_XE if i % 2 == 0 else G1_XO, 1024 * i), "D%d" % stage, 1))
    w = ["s_mul_i32 s50, s%d, 3072" % S_WV, "s_add_u32 s50, s50, %d" % (WR + slot * 12288), "s_mov_b32 m0, s50", wo]
    for m in range(3):
        w.append(V("buffer_load_dwordx4 v%d, s[20:23], s49 offen offset:%d lds" % (G1_WM + m, 1024 * m), "D%d" % stage, 1))
    return x, w

def toep_loads(A):
    A("s_lshl_b32 s55, s%d, 12" % S_CH0)
    for ch in range(2):
        d = 8 + 4 * ch
        A("s_add_u32 s%d, s%d, s55" % (d, P_SSMK)); A("s_addc_u32 s%d, s%d, 0" % (d + 1, P_SSMK + 1))
        if ch == 1:
            A("s_add_u32 s%d, s%d, 4096" % (d, d)); A("s_addc_u32 s%d, s%d, 0" % (d + 1, d + 1))
        A("s_mov_b32 s%d, 4096" % (d + 2)); A("s_mov_b32 s%d, 0x20000" % (d + 3))
    for ch in range(2):
        d = 8 + 4 * ch; b = TPH + 6 * ch
        A.vmop("buffer_load_dwordx4 v[%d:%d], v%d, s[%d:%d], 0 offen" % (b, b + 3, TPA, d, d + 3), "toep")
        A.vmop("buffer_load_dwordx2 v[%d:%d], v%d, s[%d:%d], 0 offen offset:16" % (b + 4, b + 5, TPA, d, d + 3), "toep")

def prep(A):
    addr_setup(A)
    x, w = g1_dma(0)
    for l in x + w: emit(A, l)
    addr_setup2(A)
    A.wait("kv")
    stamp(A)
    M = Sub()
    KF = 160; VF = 188; WF = 204; AC = 220; PK = 64
    for r in range(7): unpack(M, KF + 4 * r, KR + 2 * r, 2)
    for c in range(4):
        M("v_lshlrev_b32 v%d, 16, v%d" % (WF + 0 + c, WR_ + 2 * c))
        M("v_and_b32 v%d, 0xffff0000, v%d" % (WF + 4 + c, WR_ + 2 * c))
        M("v_lshlrev_b32 v%d, 16, v%d" % (WF + 8 + c, WR_ + 2 * c + 1))
        M("v_and_b32 v%d, 0xffff0000, v%d" % (WF + 12 + c, WR_ + 2 * c + 1))
    for r in range(4): unpack(M, VF + 4 * r, VR + 2 * r, 2)
    for o in range(4):
        for h in range(2): pk(M, "v_pk_mul_f32", AC + 4 * o + 2 * h, KF + 4 * o + 2 * h, WF + 12 + 2 * h)
    for j in (2, 1, 0):
        for o in range(4):
            for h in range(2): pk(M, "v_pk_fma_f32", AC + 4 * o + 2 * h, KF + 4 * (3 + o - j) + 2 * h, WF + 4 * j + 2 * h, AC + 4 * o + 2 * h)
    for o in range(4):
        for h in range(2): pk(M, "v_pk_mul_f32", AC + 4 * o + 2 * h, AC + 4 * o + 2 * h, VF + 4 * o + 2 * h)
    for c in range(4):
        M("v_cvt_pk_bf16_f32 v%d, v%d, v%d" % (PK + 2 * c, AC + 12 + c, AC + 8 + c))
        M("v_cvt_pk_bf16_f32 v%d, v%d, v%d" % (PK + 2 * c + 1, AC + 4 + c, AC + c))
    VP, VA = 78, 79
    M("v_sub_u32 v%d, 15, v%d" % (VP, VRQ))
    M("v_lshrrev_b32 v%d, 1, v%d" % (VA, VP))
    M("v_and_b32 v%d, 7, v%d" % (VA + 1, VCQ))
    M("v_xor_b32 v%d, v%d, v%d" % (VA, VA, VA + 1))
    M("v_lshlrev_b32 v%d, 4, v%d" % (VA, VA))
    M("v_and_b32 v%d, 1, v%d" % (VP, VP))
    M("v_lshl_add_u32 v%d, v%d, 3, v%d" % (VA, VP, VA))
    M("v_lshl_add_u32 v%d, v%d, 9, v%d" % (VA, VCQ, VA))
    M("v_add_u32 v%d, %d, v%d" % (VA, KVT_T, VA))
    for c in range(4): M("ds_write_b64 v%d, v[%d:%d] offset:%d" % (VA, PK + 2 * c, PK + 2 * c + 1, 128 * c))
    for l in M.ins(): A(l)
    a_, b_ = prep_tail_items()
    A("s_waitcnt lgkmcnt(0)")
    A("s_barrier")
    for l in a_: A(l)
    A("s_waitcnt lgkmcnt(0)")
    for l in b_: emit(A, l)
    A.wait("x")
    M = Sub()
    U0, U1 = 84, 92
    unpack(M, U0, X0, 4); unpack(M, U1, X1, 4)
    R0, R1 = 100, 102
    for (U, R) in ((U0, R0), (U1, R1)): pk(M, "v_pk_add_f32", R, U, U + 2)
    for i in (4, 6):
        for (U, R) in ((U0, R0), (U1, R1)): pk(M, "v_pk_add_f32", R, R, U + i)
    for (U, R) in ((U0, R0), (U1, R1)): M("v_add_f32 v%d, v%d, v%d" % (R, R, R + 1))
    wave_reduce(M, [R0, R1], [54, 55])
    M("s_mov_b32 s52, 0x3b000000")
    M0_, M1_ = 104, 106
    M("v_mov_b32 v%d, s54" % M0_); M("v_mov_b32 v%d, s55" % M1_)
    M("v_mul_f32 v%d, s52, v%d" % (M0_, M0_)); M("v_mul_f32 v%d, s52, v%d" % (M1_, M1_))
    M("v_mov_b32 v%d, v%d" % (M0_ + 1, M0_)); M("v_mov_b32 v%d, v%d" % (M1_ + 1, M1_))
    for i in range(0, 8, 2):
        for (U, Mm) in ((U0, M0_), (U1, M1_)): pk(M, "v_pk_add_f32", U + i, U + i, Mm, None, NEG1)
    for (D, R) in ((U0, R0), (U1, R1)): pk(M, "v_pk_mul_f32", R, D, D)
    for i in (2, 4, 6):
        for (D, R) in ((U0, R0), (U1, R1)): pk(M, "v_pk_fma_f32", R, D + i, D + i, R)
    for (D, R) in ((U0, R0), (U1, R1)): M("v_add_f32 v%d, v%d, v%d" % (R, R, R + 1))
    wave_reduce(M, [R0, R1], [54, 55])
    M("v_mov_b32 v%d, s54" % R0); M("v_mov_b32 v%d, s55" % R1)
    M("s_mov_b32 s53, 0x3727c5ac")
    RR = ((R0, M0_), (R1, M1_))
    for (R, Mm) in RR: M("v_mul_f32 v%d, s52, v%d" % (R, R))
    for (R, Mm) in RR: bf16_round(M, R, R)
    for (R, Mm) in RR: M("v_add_f32 v%d, s53, v%d" % (R, R))
    for (R, Mm) in RR: bf16_round(M, R, R)
    for (R, Mm) in RR: M("v_sqrt_f32 v%d, v%d" % (R, R))
    for (R, Mm) in RR: bf16_round(M, Mm, Mm)
    for (R, Mm) in RR: bf16_round(M, R, R)
    for (R, Mm) in RR: M("v_rcp_f32 v%d, v%d" % (R, R))
    ST4 = 108
    M("v_mov_b32 v%d, v%d" % (ST4, M0_)); M("v_mov_b32 v%d, v%d" % (ST4 + 2, M1_))
    M("v_mov_b32 v%d, v%d" % (ST4 + 1, R0)); M("v_mov_b32 v%d, v%d" % (ST4 + 3, R1))
    x, w = g1_dma(1)
    spread(A, M.ins(), x + w)
    T = 118
    A("v_bfe_u32 v%d, v1, 2, 1" % T)
    A("v_lshlrev_b32 v%d, 10, v%d" % (T + 1, T))
    A("v_lshrrev_b32 v%d, 5, v1" % (T + 2))
    A("v_lshl_add_u32 v%d, v%d, 8, v%d" % (T + 1, T + 2, T + 1))
    A("v_bfe_u32 v%d, v1, 3, 1" % (T + 2))
    A("v_lshl_add_u32 v%d, v%d, 7, v%d" % (T + 1, T + 2, T + 1))
    A("v_bfe_u32 v%d, v1, 4, 1" % (T + 2))
    A("v_lshlrev_b32 v%d, 1, v%d" % (T + 2, T + 2))
    A("v_bfe_u32 v%d, v1, 1, 1" % (T + 3))
    A("v_add_u32 v%d, v%d, v%d" % (T + 2, T + 2, T + 3))
    A("v_lshl_add_u32 v%d, v%d, 2, v%d" % (T + 2, T, T + 2))
    A("v_lshl_add_u32 v%d, v%d, 4, v%d" % (T + 1, T + 2, T + 1))
    A("v_and_b32 v%d, 1, v1" % (T + 2))
    A("v_lshl_add_u32 v%d, v%d, 3, v%d" % (T + 1, T + 2, T + 1))
    A("s_lshl_b32 s48, s%d, 11" % S_WV)
    A("s_add_u32 s48, s48, %d" % W2S)
    A("v_add_u32 v%d, s48, v%d" % (T + 4, T + 1))
    A("v_xor_b32 v%d, 64, v%d" % (T + 5, T + 4))
    x, w = g1_dma(2)
    for l in x + w: emit(A, l)
    A.wait("w2u")
    WQ = 64
    for dt in range(2):
        for h in range(2):
            b = WQ + 4 * dt + 2 * h
            A("ds_read_b64_tr_b16 v[%d:%d], v%d offset:%d" % (b, b + 1, T + 4 + dt, 512 * h))
    A("s_mul_i32 s48, s%d, %d" % (S_XCD, 86 * 2048))
    A("s_add_u32 s48, s48, 0x%x" % WS_W2F)
    srd_s(A, 12, 48, 86 * 2048)
    A("s_lshl_b32 s48, s%d, 11" % S_W2U)
    A("v_lshlrev_b32 v%d, 4, v1" % T)
    A("s_waitcnt lgkmcnt(0)")
    A.vmop("buffer_store_dwordx4 v[%d:%d], v%d, s[12:15], s48 offen %s" % (WQ, WQ + 3, T, SC), "pst")
    A.vmop("buffer_store_dwordx4 v[%d:%d], v%d, s[12:15], s48 offen offset:1024 %s" % (WQ + 4, WQ + 7, T, SC), "pst")
    A.wait("toep")
    for l in toeplitz_lines(): A(l)
    toeplitz_head(A)
    A.wait("D0", 0)
    A("s_barrier")
    stamp(A)
    for l in g1_reads(G1_SET[0], 0): A(l)
    srd(A, 8, P_WS, 2048 * 8, WS_ST)
    A("s_lshl_b32 s50, s%d, 3" % S_ROW)
    A("v_mov_b32 v173, 0")
    A("s_mov_b64 exec, 1")
    A.vmop("buffer_store_dwordx4 v[%d:%d], v173, s[8:11], s50 offen %s" % (ST4, ST4 + 3, SC), "pst")
    A("s_mov_b64 exec, -1")
    A("s_mul_i32 s%d, s%d, 0x9E3779B1" % (S_NONCE, S_E))
    A("s_add_u32 s%d, s%d, 0x7F4A7C15" % (S_NONCE, S_NONCE))

def prep_tail_items():
    VRP, VCG = 160, 161; VB = 162; RD = 164; VG = 172
    a = ["v_lshrrev_b32 v%d, 3, v0" % VRP, "v_and_b32 v%d, 7, v0" % VCG,
         "v_bfe_u32 v%d, v%d, 2, 3" % (VB, VRP), "v_xor_b32 v%d, v%d, v%d" % (VB, VB, VCG),
         "v_lshlrev_b32 v%d, 4, v%d" % (VB, VB), "v_lshl_add_u32 v%d, v%d, 7, v%d" % (VB, VRP, VB),
         "v_add_u32 v%d, %d, v%d" % (VB, KVT_T, VB),
         "ds_read_b128 v[%d:%d], v%d" % (RD, RD + 3, VB), "ds_read_b128 v[%d:%d], v%d offset:4096" % (RD + 4, RD + 7, VB),
         "v_lshlrev_b32 v%d, 12, v%d" % (VG, VRP), "v_lshl_add_u32 v%d, v%d, 4, v%d" % (VG, VCG, VG),
         "s_add_u32 s12, s%d, 0x%x\ns_addc_u32 s13, s%d, 0\ns_mov_b32 s14, 0x200000\ns_mov_b32 s15, 0x20000" % (P_WS, WS_KVT, P_WS + 1),
         "s_lshl_b32 s54, s%d, 18\ns_lshl_b32 s55, s%d, 7\ns_sub_u32 s55, 3968, s55\ns_add_u32 s54, s54, s55\ns_add_u32 s55, s54, 0x20000" % (S_XCD, S_J)]
    b = [V("buffer_store_dwordx4 v[%d:%d], v%d, s[12:15], s54 offen %s" % (RD, RD + 3, VG, SC), "pst", 1),
         V("buffer_store_dwordx4 v[%d:%d], v%d, s[12:15], s55 offen %s" % (RD + 4, RD + 7, VG, SC), "pst", 1)]
    return a, b

def toeplitz_lines():
    M = Sub(); T = 160
    M("v_add_u32 v%d, %d, v%d" % (TPA + 1, TOEP + 32, TPA))
    for ch in range(2):
        H = TPH + 6 * ch; o = ch * 16640; b = T + 12 * ch
        for i in range(4): M("v_alignbyte_b32 v%d, v%d, v%d, 2" % (b + i, H + i + 1, H + i))
        M("ds_write_b128 v%d, v[%d:%d] offset:%d" % (TPA + 1, H, H + 3, o))
        for i in range(4): M("v_alignbyte_b32 v%d, v%d, v%d, 2" % (b + 4 + i, H + i + 2, H + i + 1))
        M("ds_write_b128 v%d, v[%d:%d] offset:%d" % (TPA + 1, b, b + 3, o + CS))
        for i in range(4): M("v_mov_b32 v%d, v%d" % (b + 8 + i, H + i + 1))
        M("ds_write_b128 v%d, v[%d:%d] offset:%d" % (TPA + 1, b + 4, b + 7, o + 3 * CS))
        M("ds_write_b128 v%d, v[%d:%d] offset:%d" % (TPA + 1, b + 8, b + 11, o + 2 * CS))
    return M.ins()

def toeplitz_head(A):
    Ld = newlabel("toep")
    A("s_cmp_lg_u32 s%d, 0" % S_WV)
    A("s_cbranch_scc1 %s" % Ld)
    T = 184; Z = T + 8
    for i in range(4): A("v_mov_b32 v%d, 0" % (Z + i))
    A("v_lshrrev_b32 v%d, 3, v1" % T)
    A("v_mul_u32_u24 v%d, 16640, v%d" % (T, T))
    A("v_bfe_u32 v%d, v1, 1, 2" % (T + 1))
    A("v_mul_u32_u24 v%d, %d, v%d" % (T + 1, CS, T + 1))
    A("v_add_u32 v%d, v%d, v%d" % (T, T, T + 1))
    A("v_and_b32 v%d, 1, v1" % (T + 1))
    A("v_lshl_add_u32 v%d, v%d, 4, v%d" % (T, T + 1, T))
    A("v_add_u32 v%d, %d, v%d" % (T, TOEP, T))
    A("s_mov_b64 exec, 0xffff")
    A("ds_write_b128 v%d, v[%d:%d]" % (T, Z, Z + 3))
    A("s_mov_b64 exec, 1")
    A("v_mov_b32 v%d, %d" % (T + 2, TOEP))
    for ch in range(2):
        L0 = TPH + 6 * ch; o = ch * 16640
        A("v_alignbyte_b32 v%d, v%d, v%d, 2" % (T + 3, L0, Z))
        A("v_alignbyte_b32 v%d, v%d, v%d, 2" % (T + 4, L0 + 1, L0))
        A("ds_write_b32 v%d, v%d offset:%d" % (T + 2, L0, o + 2 * CS + 28))
        A("ds_write_b32 v%d, v%d offset:%d" % (T + 2, T + 3, o + CS + 28))
        A("ds_write_b32 v%d, v%d offset:%d" % (T + 2, T + 3, o + 3 * CS + 24))
        A("ds_write_b32 v%d, v%d offset:%d" % (T + 2, T + 4, o + 3 * CS + 28))
    A("s_mov_b64 exec, -1")
    A.label(Ld)

def g1_reads(setb, p0):
    L = []
    for kk in range(2):
        p = p0 + kk; b = setb + 16 * kk
        L.append("ds_read_b128 v[%d:%d], v%d" % (b + 12, b + 15, G1_XA + p))
        for f in range(3):
            for h in range(2):
                L.append("ds_read_b64_tr_b16 v[%d:%d], v%d offset:%d" % (b + 4 * f + 2 * h, b + 4 * f + 2 * h + 1, G1_WA + p, 768 * h + 64 * f))
    return L

def g1_mfma(setb, cs=False, first=False):
    L = []
    for kk in range(2):
        b = setb + 16 * kk
        for f in range(3):
            c = "0" if (first and kk == 0) else "v[%d:%d]" % (G1_ACC + 16 * f, G1_ACC + 16 * f + 15)
            L.append("v_mfma_f32_32x32x16_bf16 v[%d:%d], v[%d:%d], v[%d:%d], %s" % (
                G1_ACC + 16 * f, G1_ACC + 16 * f + 15, b + 4 * f, b + 4 * f + 3, b + 12, b + 15, c))
        if cs and kk == 0:
            for f in range(3):
                c = "0" if first else "a[%d:%d]" % (CSA + 16 * f, CSA + 16 * f + 15)
                L.append("v_mfma_f32_32x32x16_bf16 a[%d:%d], v[%d:%d], v[%d:%d], %s" % (
                    CSA + 16 * f, CSA + 16 * f + 15, G1_ONES, G1_ONES + 3, b + 4 * f, b + 4 * f + 3, c))
    return L

def w_load_items(p):
    return ["s_add_u32 s51, s%d, s%d\ns_lshl_b32 s51, s51, 11" % (S_U0, S_WPOS),
            V("buffer_load_dwordx4 a[%d:%d], v%d, s[12:15], s51 offen %s" % (8 * p, 8 * p + 3, WLA, SCL), "W%d" % p, 1),
            "s_add_u32 s%d, s%d, 1\ns_cmp_eq_u32 s%d, s%d\ns_cselect_b32 s%d, 0, s%d" % (S_WPOS, S_WPOS, S_WPOS, S_NU, S_WPOS, S_WPOS),
            V("buffer_load_dwordx4 a[%d:%d], v%d, s[12:15], s51 offen offset:1024 %s" % (8 * p + 4, 8 * p + 7, WLA, SCL), "W%d" % p, 1)]
WP = [0]
def wl(n):
    L = []
    for _ in range(n // 2):
        if WP[0] < 22: L += w_load_items(WP[0]); WP[0] += 1
    return L

def gemm1(A):
    wt = cfg.wtail
    pa_items = ["s_lshl_b32 s52, s%d, 5" % S_XCD, "v_add_u32 v2, s52, v1", "v_lshlrev_b32 v2, 7, v2", "v_add_u32 v2, 0x%x, v2" % (WS_FLAG + FL_P),
                V("s_mov_b64 exec, 0xffffffff\nglobal_load_dword v3, v2, s[%d:%d] %s\ns_mov_b64 exec, -1" % (P_WS, P_WS + 1, SCL), "pa", 1),
                "s_lshl_b32 s52, s%d, 5" % S_CB, "v_add_u32 v%d, s52, v1" % PB, "v_lshlrev_b32 v%d, 7, v%d" % (PB, PB), "v_add_u32 v%d, 0x%x, v%d" % (PB, WS_FLAG + FL_P, PB),
                V("s_mov_b64 exec, 0xffffffff\nglobal_load_dword v%d, v%d, s[%d:%d] %s\ns_mov_b64 exec, -1" % (PB + 1, PB, P_WS, P_WS + 1, SCL), "pb", 1),
                "s_lshl_b32 s52, s%d, 12\ns_add_u32 s52, s52, 0x%x\ns_add_u32 s12, s%d, s52\ns_addc_u32 s13, s%d, 0\ns_mov_b32 s14, 8192\ns_mov_b32 s15, 0x20000" % (S_CH0, WS_KVT, P_WS, P_WS + 1),
                "v_add_u32 v%d, 1, v%d" % (UA + 1, UA),
                "s_add_u32 s8, s%d, 0x%x\ns_addc_u32 s9, s%d, 0\ns_mov_b32 s10, %d\ns_mov_b32 s11, 0x20000" % (P_WS, WS_ST, P_WS + 1, 2048 * 8),
                "v_and_b32 v%d, 7, v1" % (PB + 2), "v_lshlrev_b32 v%d, 2, v%d" % (PB + 2, PB + 2), "v_bfe_u32 v%d, v1, 3, 2" % (PB + 3),
                "v_add_u32 v%d, v%d, v%d" % (PB + 2, PB + 2, PB + 3), "v_lshlrev_b32 v%d, 3, v%d" % (PB + 2, PB + 2),
                "s_lshl_b32 s53, s%d, 2\ns_add_u32 s53, s53, s%d\ns_lshl_b32 s53, s53, 8" % (S_CL, S_WV)]
    u_items = ["v_add_u32 v%d, %d, v%d" % (UA + 1, UB, UA),
               "ds_write_b128 v%d, v[%d:%d]" % (UA + 1, UL, UL + 3), "ds_write_b128 v%d, v[%d:%d] offset:4608" % (UA + 1, UL + 4, UL + 7),
               "v_mov_b32 v164, 0", "v_mov_b32 v165, 0", "v_mov_b32 v166, 0", "v_mov_b32 v167, 0",
               "v_lshrrev_b32 v168, 5, v1", "v_mul_u32_u24 v168, 4608, v168", "v_and_b32 v169, 31, v1",
               "v_lshl_add_u32 v168, v169, 4, v168", "v_add_u32 v168, %d, v168" % (UB + 4096),
               "ds_write_b128 v168, v[164:167]"]
    def lstamp(idx):
        if cfg.lprof:
            A("s_memtime s[96:97]"); A("s_waitcnt lgkmcnt(0)")
            A("v_mov_b32 v238, s96"); A("v_cmp_eq_u32 vcc, %d, v1" % idx); A("v_cndmask_b32 v239, v239, v238, vcc")
    for it in range(8):
        A("s_waitcnt lgkmcnt(0)")
        lstamp(2 * it)
        rdB = g1_reads(G1_SET[1], 2)
        dmx, dmw = g1_dma(it + 3) if it + 3 < 8 else ([], [])
        side = list(dmx)
        if it == 3: side = side + pa_items
        if it >= 5: side = wl(wt[2 * (it - 5)])
        if it == 7: side = side + u_items
        weave2(A, g1_mfma(G1_SET[0], True, it == 0), rdB, side)
        if it < 7:
            if it == 4: A.wait("pb", 0)
            elif it == 1: A("s_waitcnt vmcnt(%d) lgkmcnt(0)" % min(A.cnt("D2"), A.cnt("pst")))
            else: A.wait("D%d" % (it + 1), 0)
            lstamp(2 * it + 1)
            A("s_barrier")
        else:
            A("s_waitcnt lgkmcnt(0)")
        if it == 1: flag_store(A, FL_P)
        if it == 4:
            poll_check(A, 2, 3, 32)
            poll_check(A, PB, PB + 1, 32)
            A.vmop("buffer_load_dwordx4 v[%d:%d], v%d, s[12:15], 0 offen %s" % (UL, UL + 3, UA, SCL), "u")
            A.vmop("buffer_load_dwordx4 v[%d:%d], v%d, s[12:15], 0 offen offset:4095 %s" % (UL + 4, UL + 7, UA + 1, SCL), "u")
            A.vmop("buffer_load_dwordx2 v[%d:%d], v%d, s[8:11], s53 offen %s" % (STV, STV + 1, PB + 2, SCL), "u")
        if it < 7:
            slot_next = (it + 1) % NSLOT
            dx = 16384 if slot_next else -16384 * (NSLOT - 1)
            dw = 12288 if slot_next else -12288 * (NSLOT - 1)
            adv = ["v_add_u32 v%d, %d, v%d" % (G1_XA + p, dx & 0xffffffff, G1_XA + p) for p in range(4)]
            adv += ["v_add_u32 v%d, %d, v%d" % (G1_WA + p, dw & 0xffffffff, G1_WA + p) for p in range(4)]
            rd = g1_reads(G1_SET[0], 0)
            for l in [adv[0], adv[4], adv[1], adv[5]]: A(l)
            side = list(dmw)
            if it >= 5: side = wl(wt[2 * (it - 5) + 1])
            weave2(A, g1_mfma(G1_SET[1]), rd + [adv[2], adv[6], adv[3], adv[7]], side, per=cfg.per2)
            if it == 4:
                A("s_mul_i32 s48, s%d, %d" % (S_CB, 86 * 2048))
                A("s_add_u32 s48, s48, 0x%x" % WS_W2F)
                srd_s(A, 12, 48, 86 * 2048)
                A("s_mov_b32 s%d, s%d" % (S_WPOS, S_ROT))
        else:
            cs_items = ["v_and_b32 v2, 31, v1", "v_lshlrev_b32 v2, 2, v2", "v_add_u32 v2, %d, v2" % CSB,
                        "s_mul_i32 s52, s%d, 384" % S_WV, "v_add_u32 v3, s52, v2"]
            cs_items += ["v_accvgpr_read_b32 v%d, a%d" % (140 + f, CSA + 16 * f) for f in range(3)]
            cs_items += ["ds_write_b32 v3, v140", "ds_write_b32 v3, v141 offset:128", "ds_write_b32 v3, v142 offset:256"]
            weave2(A, g1_mfma(G1_SET[1]), cs_items, wl(wt[5]), per=2)
    stamp(A)
    if cfg.lprof: A("v_accvgpr_write_b32 a255, v239")
    A("s_waitcnt lgkmcnt(0)")
    A("s_barrier")
    stamp(A)
    CSV = 64
    for w in range(4):
        for f in range(3):
            A("ds_read_b32 v%d, v2 offset:%d" % (112 + 3 * w + f, 384 * w + 128 * f))
    cr = conv_reads(CV_S0, 0)
    for l in cr[:3]: A(l)
    A("s_waitcnt lgkmcnt(3)")
    for f in range(3):
        A("v_add_f32 v%d, v%d, v%d" % (112 + f, 112 + f, 115 + f))
        A("v_add_f32 v%d, v%d, v%d" % (118 + f, 118 + f, 121 + f))
    for f in range(3): A("v_add_f32 v%d, v%d, v%d" % (112 + f, 112 + f, 118 + f))
    for f in range(3): A("ds_write_b32 v3, v%d offset:%d" % (112 + f, 1536 + 128 * f))
    A("v_lshrrev_b32 v2, 5, v1")
    A("v_lshlrev_b32 v2, 4, v2")
    A("v_add_u32 v2, %d, v2" % (CSB + 1536))
    A("v_add_u32 v2, s52, v2")
    for f in range(3):
        for g in range(4):
            b = CSV + 16 * f + 4 * g
            A("ds_read_b128 v[%d:%d], v2 offset:%d" % (b, b + 3, 128 * f + 32 * g))
    for l in cr[3:]: A(l)
    NM = 112
    A("v_sub_f32 v%d, 0, v%d" % (NM, STV))
    A("v_mov_b32 v%d, v%d" % (NM + 1, NM))
    srd(A, 16, P_WS, 64 * 86 * 1024, WS_H)
    A("s_lshl_b32 s48, s%d, 2" % S_CL)
    A("s_add_u32 s48, s48, s%d" % S_WV)
    A("s_mul_i32 s48, s48, 86")
    A("s_lshl_b32 s49, s%d, 1" % S_UNIT0)
    A("s_add_u32 s48, s48, s49")
    A("s_lshl_b32 s56, s48, 10")
    A("s_add_u32 s55, s56, 4096")
    VA = 114; PK = 116
    A("v_lshlrev_b32 v%d, 4, v1" % VA)
    A("s_waitcnt lgkmcnt(0)")
    Ls = newlabel("g1s")
    wside = wl(cfg.wepi)
    for f in range(3):
        if f == 2:
            for l in wside: emit(A, l)
            wside = []
            A("s_cmp_ge_u32 s%d, 11" % S_MEM)
            A("s_cbranch_scc1 %s" % Ls)
        for i in range(0, 16, 2):
            a_ = G1_ACC + 16 * f + i; c = CSV + 16 * f + i
            A("v_pk_fma_f32 v[%d:%d], v[%d:%d], v[%d:%d], v[%d:%d]" % (a_, a_ + 1, c, c + 1, NM, NM + 1, a_, a_ + 1))
        P_ = PK + 8 * f
        for i in range(8):
            A("v_cvt_pk_bf16_f32 v%d, v%d, v%d" % (P_ + i, G1_ACC + 16 * f + 2 * i, G1_ACC + 16 * f + 2 * i + 1))
        for i in range(8):
            A("v_pk_max_i16 v%d, v%d, 0" % (P_ + i, P_ + i))
        for h in range(2):
            off = f * 2048 + h * 1024
            so = "s56" if off < 4096 else "s55"
            A.vmop("buffer_store_dwordx4 v[%d:%d], v%d, s[16:19], %s offen offset:%d %s" % (P_ + 4 * h, P_ + 4 * h + 3, VA, so, off % 4096, SC), "hst", certain=(f < 2))
    A.label(Ls)

CV_ACC = 208; CV_S0 = 144; CV_S1 = 64
def conv_reads(setb, r):
    def rdB(d): return ["ds_read_b128 v[%d:%d], v%d offset:%d" % (setb + 32 + 4 * d, setb + 32 + 4 * d + 3, CV_BA, 512 * (7 - d) + 64 * r)]
    def rdA(t): return ["ds_read_b64 v[%d:%d], v%d offset:%d" % (setb + 4 * t, setb + 4 * t + 1, CV_AA, 512 * t + 64 * r),
                        "ds_read_b64 v[%d:%d], v%d offset:%d" % (setb + 4 * t + 2, setb + 4 * t + 3, CV_AA, 512 * t + 64 * r + 8)]
    L = rdB(0)
    for t in range(8): L += rdA(t)
    for d in range(1, 8): L += rdB(d)
    return L
def conv_mfmas(setb, first=False):
    L = []
    for d in range(8):
        for j in range(d, 8):
            t = j - d
            c = "0" if (first and d == 0) else "v[%d:%d]" % (CV_ACC + 4 * j, CV_ACC + 4 * j + 3)
            L.append("v_mfma_f32_16x16x32_bf16 v[%d:%d], v[%d:%d], v[%d:%d], %s" % (
                CV_ACC + 4 * j, CV_ACC + 4 * j + 3, setb + 4 * t, setb + 4 * t + 3, setb + 32 + 4 * d, setb + 32 + 4 * d + 3, c))
    return L

H_V = 64; ACC2 = 176
def hreg(p):
    if p < 6: return 16 + 8 * p
    if p < 8: return 128 + 8 * (p - 6)
    if p < 10: return 240 + 8 * (p - 8)
    return 64 + 8 * (p - 10)
def h_load_items(p):
    b = hreg(p)
    return ["s_add_u32 s51, s%d, s%d\ns_lshl_b32 s51, s51, 10" % (S_U0, S_WPOS),
            V("buffer_load_dwordx4 v[%d:%d], v%d, s[16:19], s51 offen %s" % (b, b + 3, HLA, SCL), "H%d" % p, 1),
            "s_add_u32 s%d, s%d, 1\ns_cmp_eq_u32 s%d, s%d\ns_cselect_b32 s%d, 0, s%d" % (S_WPOS, S_WPOS, S_WPOS, S_NU, S_WPOS, S_WPOS),
            V("buffer_load_dwordx4 v[%d:%d], v%d, s[20:23], s51 offen %s" % (b + 4, b + 7, HLA, SCL), "H%d" % p, 1)]
HLA = 13

def conv(A):
    T = 224 + 16
    sets = [CV_S0, CV_S1]
    rem = list(range(WP[0], 22)); nr = 4 if cfg.wr3 else 3; q_ = (len(rem) + nr - 1) // nr
    wsched = [rem[i * q_:(i + 1) * q_] for i in range(nr)] + [[]] * (4 - nr)
    for r in range(4):
        A("s_waitcnt lgkmcnt(0)")
        if r == cfg.hpub:
            A.wait("hst")
            A("s_barrier")
            flag_store(A, FL_H)
        if r == 3:
            A("s_and_b32 s54, s%d, 1" % S_J)
            poll_addr(A, 2, FL_H, S_XCD, 2, 54)
            poll_issue(A, 2, 3, 16, "ph")
        mf = conv_mfmas(sets[r & 1], r == 0)
        rd = conv_reads(sets[(r + 1) & 1], r + 1) if r < 3 else []
        side = []
        for p in wsched[r]: side += w_load_items(p)
        weave2(A, mf, rd, side, per=1)
    WP[0] = 22
    stamp(A)
    A.wait("ph")
    poll_check(A, 2, 3, 16)
    for tt in range(2):
        d = 16 + 4 * tt
        A("s_lshl_b32 s48, s%d, 1" % S_TB64)
        A("s_add_u32 s48, s48, %d" % tt)
        A("s_mul_i32 s48, s48, %d" % (86 * 1024))
        A("s_add_u32 s48, s48, 0x%x" % WS_H)
        srd_s(A, d, 48, 86 * 1024)
    A("v_lshlrev_b32 v%d, 4, v1" % HLA)
    A("s_mov_b32 s%d, s%d" % (S_WPOS, S_ROT))
    npre1 = min(6, cfg.hpre)
    for p in range(npre1):
        for l in h_load_items(p): emit(A, l)
    E0 = 160
    A("s_barrier")
    A("s_lshl_b32 s50, s%d, 13" % S_WV)
    A("v_lshlrev_b32 v%d, 4, v1" % E0)
    A("v_add_u32 v%d, s50, v%d" % (E0 + 1, E0))
    for j in range(8):
        A("ds_write_b128 v%d, v[%d:%d] offset:%d" % (E0 + 1, CV_ACC + 4 * j, CV_ACC + 4 * j + 3, CVX + 1024 * j))
    A("s_waitcnt lgkmcnt(0)")
    A("s_barrier")
    A("s_lshl_b32 s55, s%d, 16" % S_DV)
    A("s_and_b32 s54, s%d, 0xffff0000" % S_DV)
    A("s_lshl_b32 s50, s%d, 11" % S_WV)
    A("v_add_u32 v%d, s50, v%d" % (E0 + 1, E0))
    R = 64
    for jj in range(2):
        for w in range(4):
            b = R + 16 * jj + 4 * w
            A("ds_read_b128 v[%d:%d], v%d offset:%d" % (b, b + 3, E0 + 1, CVX + 8192 * w + 1024 * jj))
    A("v_and_b32 v%d, 15, v1" % (E0 + 2))
    A("v_lshrrev_b32 v%d, 4, v1" % (E0 + 3))
    A("v_lshlrev_b32 v%d, 5, v%d" % (E0 + 4, E0 + 2))
    A("v_lshl_add_u32 v%d, v%d, 3, v%d" % (E0 + 4, E0 + 3, E0 + 4))
    A("s_lshl_b32 s50, s%d, 10" % S_WV)
    A("s_sub_u32 s50, %d, s50" % (UB + 4088 - 512))
    A("v_sub_u32 v%d, s50, v%d" % (E0 + 4, E0 + 4))
    UU = 96
    for jj in range(2):
        for ch in range(2):
            b = UU + 4 * jj + 2 * ch
            A("ds_read_b64 v[%d:%d], v%d offset:%d" % (b, b + 1, E0 + 4, ch * 4608 + (512 if jj == 0 else 0)))
    for p in range(npre1, cfg.hpre):
        for l in h_load_items(p): emit(A, l)
    srd(A, 8, P_WS, 0x200000, WS_Y2)
    A("s_lshl_b32 s50, s%d, 12" % S_CH0)
    A("s_lshl_b32 s51, s%d, 11" % S_WV)
    A("s_add_u32 s50, s50, s51")
    A("v_lshlrev_b32 v%d, 6, v%d" % (E0 + 5, E0 + 2))
    A("v_lshl_add_u32 v%d, v%d, 4, v%d" % (E0 + 5, E0 + 3, E0 + 5))
    A("s_waitcnt lgkmcnt(0)")
    UF = 104; O = 120
    for jj in range(2):
        for ch in range(2):
            b = R + 16 * jj + 8 * ch
            for i in range(0, 4, 2): pk(A, "v_pk_add_f32", b + i, b + i, b + 4 + i)
            ub = UU + 4 * jj + 2 * ch
            A("v_and_b32 v%d, 0xffff0000, v%d" % (UF + 0, ub + 1))
            A("v_lshlrev_b32 v%d, 16, v%d" % (UF + 1, ub + 1))
            A("v_and_b32 v%d, 0xffff0000, v%d" % (UF + 2, ub))
            A("v_lshlrev_b32 v%d, 16, v%d" % (UF + 3, ub))
            for i in range(4): A("v_fmac_f32 v%d, s%d, v%d" % (b + i, 55 if ch == 0 else 54, UF + i))
        for i in range(4): A("v_cvt_pk_bf16_f32 v%d, v%d, v%d" % (O + 4 * jj + i, R + 16 * jj + i, R + 16 * jj + 8 + i))
    A.vmop("buffer_store_dwordx4 v[%d:%d], v%d, s[8:11], s50 offen %s" % (O, O + 3, E0 + 5, SC), "yst")
    A.vmop("buffer_store_dwordx4 v[%d:%d], v%d, s[8:11], s50 offen offset:1024 %s" % (O + 4, O + 7, E0 + 5, SC), "yst")

XR_ = 208; SV = 216; YR = 220
def gemm2(A):
    PD = 6
    issued = cfg.hpre
    L = newlabel("g2")
    for p in range(22):
        if p == 20:
            A("s_cmp_eq_u32 s%d, 3" % S_WV); A("s_cbranch_scc1 %s" % L)
        A.wait("H%d" % p)
        A.wait("W%d" % p) if p == 0 else None
        mf = []
        for dt in range(2):
            for tt in range(2):
                ac = ACC2 + 16 * (2 * dt + tt); w = 8 * p + 4 * dt; h = hreg(p) + 4 * tt
                c = "0" if p == 0 else "a[%d:%d]" % (ac, ac + 15)
                mf.append("v_mfma_f32_32x32x16_bf16 a[%d:%d], a[%d:%d], v[%d:%d], %s" % (ac, ac + 15, w, w + 3, h, h + 3, c))
        side = []
        while issued < 22 and issued <= p + PD:
            side += h_load_items(issued); issued += 1
            break
        weave2(A, mf, [], side)
        if p == 3:
            A.wait("yst")
            A("s_barrier")
            flag_store(A, FL_Y)
        if p == 12:
            srd(A, 12, P_Q, 0x200000)
            A("s_lshl_b32 s52, s%d, 16" % S_TB64)
            A("s_lshl_b32 s53, s%d, 7" % S_CB)
            A("s_add_u32 s52, s52, s53")
            A("s_add_u32 s53, s52, 0x8000")
        if p == 16:
            A.vmop("buffer_load_dwordx4 v[%d:%d], v%d, s[12:15], s52 offen" % (XR_, XR_ + 3, FN_XO), "fx")
            A.vmop("buffer_load_dwordx4 v[%d:%d], v%d, s[12:15], s53 offen" % (XR_ + 4, XR_ + 7, FN_XO), "fx")
            srd(A, 8, P_WS, 2048 * 8, WS_ST)
            A("s_lshl_b32 s48, s%d, 9" % S_TB64)
            A.vmop("buffer_load_dwordx2 v[%d:%d], v%d, s[8:11], s48 offen %s" % (SV, SV + 1, FN_ST, SCL), "fx")
            A.vmop("buffer_load_dwordx2 v[%d:%d], v%d, s[8:11], s48 offen offset:256 %s" % (SV + 2, SV + 3, FN_ST, SCL), "fx")
            poll_addr(A, 2, FL_Y, S_CB)
            poll_issue(A, 2, 3, 32, "py")
    A.label(L)

def final(A):
    A("s_waitcnt vmcnt(0)")
    poll_check(A, 2, 3, 32)
    srd(A, 8, P_WS, 0x200000, WS_Y2)
    srd(A, 20, P_OUT, 0x200000)
    A("s_lshl_b32 s48, s%d, 18" % S_CB)
    A("s_lshl_b32 s49, s%d, 8" % S_TB64)
    A("s_add_u32 s48, s48, s49")
    A("s_add_u32 s49, s48, 0x20000")
    A("buffer_load_dwordx4 v[%d:%d], v%d, s[8:11], s48 offen %s" % (YR, YR + 3, FN_YG, SCL))
    A("buffer_load_dwordx4 v[%d:%d], v%d, s[8:11], s49 offen %s" % (YR + 4, YR + 7, FN_YG, SCL))
    A("s_barrier")
    for dt in range(2):
        for tt in range(2):
            ac = ACC2 + 16 * (2 * dt + tt)
            for g in range(4):
                A("ds_write_b128 v%d, a[%d:%d] offset:%d" % (FN_RW, ac + 4 * g, ac + 4 * g + 3, RED + tt * 32 * 272 + dt * 128 + g * 32))
    A("s_waitcnt vmcnt(0)")
    A("ds_write_b128 v%d, v[%d:%d]" % (FN_YL, YR, YR + 3))
    A("ds_write_b128 v%d, v[%d:%d] offset:%d" % (FN_YL, YR + 4, YR + 7, 16 * 272))
    A("s_waitcnt lgkmcnt(0)")
    A("s_barrier")
    stamp(A)
    P = 64; YV = 44
    def fin_reads(i):
        for w in range(4):
            for hlf in range(2):
                b = P + 32 * i + 8 * w + 4 * hlf
                A("ds_read_b128 v[%d:%d], v%d offset:%d" % (b, b + 3, FN_RD, RED + w * 17408 + i * 32 * 272 + 16 * hlf))
        for k in range(4):
            A("ds_read_b32 v%d, v%d offset:%d" % (YV + 4 * i + k, FN_YR, k * 272 + i * 128))
    fin_reads(0)
    A("s_mov_b32 s54, 0xbfb8aa3b")
    E = 128; F = 136; Gx = 144; O = 152; B2 = 160; XU = 168
    for i in range(2):
        A("v_mov_b32 v%d, v%d" % (B2 + 4 * i, SV + 2 * i)); A("v_mov_b32 v%d, v%d" % (B2 + 4 * i + 1, SV + 2 * i))
        A("v_mov_b32 v%d, v%d" % (B2 + 4 * i + 2, SV + 2 * i + 1)); A("v_mov_b32 v%d, v%d" % (B2 + 4 * i + 3, SV + 2 * i + 1))
        unpack(A, XU + 16 * i, XR_ + 4 * i, 4)
        for e in range(0, 8, 2): pk(A, "v_pk_add_f32", XU + 16 * i + 8 + e, XU + 16 * i + e, B2 + 4 * i, None, NEG1)
        for e in range(0, 8, 2): pk(A, "v_pk_mul_f32", XU + 16 * i + 8 + e, XU + 16 * i + 8 + e, B2 + 4 * i + 2)
    for i in range(2):
        A("s_waitcnt lgkmcnt(0)")
        if i == 0: fin_reads(1)
        b = P + 32 * i
        for e in range(0, 8, 2):
            pk(A, "v_pk_add_f32", b + e, b + e, b + 8 + e)
            pk(A, "v_pk_add_f32", b + 16 + e, b + 16 + e, b + 24 + e)
        for e in range(0, 8, 2): pk(A, "v_pk_add_f32", b + e, b + e, b + 16 + e)
        for e in range(0, 8, 2): pk(A, "v_pk_mul_f32", b + e, b + e, B2 + 4 * i + 2)
        for e in range(8): A("v_mul_f32 v%d, s54, v%d" % (E + e, b + e))
        for e in range(8): A("v_exp_f32 v%d, v%d" % (E + e, E + e))
        unpack(A, F, YV + 4 * i, 4)
        for e in range(8): A("v_add_f32 v%d, 1.0, v%d" % (E + e, E + e))
        for e in range(8): A("v_rcp_f32 v%d, v%d" % (E + e, E + e))
        for e in range(0, 8, 2): pk(A, "v_pk_mul_f32", F + e, F + e, XU + 16 * i + 8 + e)
        for e in range(0, 8, 2): pk(A, "v_pk_mul_f32", F + e, F + e, b + e)
        for e in range(0, 8, 2): pk(A, "v_pk_fma_f32", Gx + e, F + e, E + e, XU + 16 * i + e)
        for e in range(4): A("v_cvt_pk_bf16_f32 v%d, v%d, v%d" % (O + 4 * i + e, Gx + 2 * e, Gx + 2 * e + 1))
        A("buffer_store_dwordx4 v[%d:%d], v%d, s[20:23], s%d offen %s" % (O + 4 * i, O + 4 * i + 3, FN_XO, 52 + i, cfg.outsc))

def epoch_update(A):
    L = newlabel("ep")
    A("s_cmp_lg_u32 s2, 0"); A("s_cbranch_scc1 %s" % L)
    A("s_cmp_lg_u32 s%d, 0" % S_WV); A("s_cbranch_scc1 %s" % L)
    A("s_mov_b32 s54, 0")
    poll_addr(A, 2, FL_Y, 54, 32)
    A("s_mov_b64 exec, 0xff")
    A("global_load_dword v3, v2, s[%d:%d] %s" % (P_WS, P_WS + 1, SCL))
    A("s_waitcnt vmcnt(0)")
    poll_check(A, 2, 3, 8)
    A("s_add_u32 s48, s%d, 1" % S_E)
    A("v_mov_b32 v3, s48")
    A("v_mov_b32 v2, 0x%x" % WS_FLAG)
    A("s_mov_b64 exec, 1")
    A("global_store_dword v2, v3, s[%d:%d] %s" % (P_WS, P_WS + 1, SC))
    A.label(L)

def prof_store(A):
    if not cfg.prof: return
    stamp(A)
    A("s_memtime s[100:101]")
    n = NST[0]
    A("s_waitcnt lgkmcnt(0)")
    A("s_cmp_lg_u32 s%d, 0" % S_WV); A("s_cbranch_scc1 L_end")
    A("s_lshl_b32 s48, s2, 7")
    A("s_add_u32 s48, s48, 0x%x" % WS_PROF)
    A("s_add_u32 s50, s%d, s48" % P_WS); A("s_addc_u32 s51, s%d, 0" % (P_WS + 1))
    A("v_mov_b32 v2, 0")
    A("s_mov_b64 exec, 1")
    for i in range(n):
        A("v_mov_b32 v3, s%d" % (72 + 2 * i))
        A("global_store_dword v2, v3, s[50:51] offset:%d" % (4 * i))
        A("s_nop 1")
    A("v_mov_b32 v3, %d" % n)
    A("global_store_dword v2, v3, s[50:51] offset:124")
    A("s_sub_u32 s48, s100, s98")
    A("v_mov_b32 v4, s48")
    A("global_store_dword v2, v4, s[50:51] offset:120")
    if cfg.lprof:
        A("s_mov_b64 exec, 0xffff")
        A("v_accvgpr_read_b32 v5, a255")
        A("v_lshlrev_b32 v6, 2, v1")
        A("s_lshl_b32 s48, s2, 6")
        A("s_add_u32 s48, s48, 0x%x" % (WS_PROF + 0x20000))
        A("v_add_u32 v6, s48, v6")
        A("global_store_dword v6, v5, s[%d:%d]" % (P_WS, P_WS + 1))
        A("s_mov_b64 exec, 1")
    if cfg.dbgstamps:
        A("s_cmp_lg_u32 s2, 0"); A("s_cbranch_scc1 L_end")
        for i in range(n):
            A("s_sub_u32 s48, s%d, s72" % (72 + 2 * i))
            A("v_mov_b32 v3, s48")
            A("global_store_dword v2, v3, s[%d:%d] offset:%d" % (P_DBG, P_DBG + 1, 4 * i))
            A("s_nop 1")

def build():
    A = G(); name = KN + "_kernel"
    NST[0] = 0; WP[0] = 0
    prologue(A, name)
    prep(A)
    gemm1(A)
    stamp(A)
    conv(A)
    stamp(A)
    gemm2(A)
    stamp(A)
    final(A)
    epoch_update(A)
    prof_store(A)
    A.label("L_end")
    A("s_endpgm")
    lines, added, probs = pad_hazards(A.lines)
    hdr = ["; H3 long-conv + gated MLP, single persistent launch (generated by a hand-written generator script)",
           "; @launch grid=(256,1,1) block=(256,1,1) lds=%d" % LDS_TOTAL,
           '.amdgcn_target "amdgcn-amd-amdhsa--gfx950"', ".text"]
    desc = ['.section .rodata,"a"', ".p2align 6", ".amdhsa_kernel %s" % name,
            "  .amdhsa_next_free_vgpr 512", "  .amdhsa_next_free_sgpr 102", "  .amdhsa_accum_offset 256",
            "  .amdhsa_group_segment_fixed_size 0", "  .amdhsa_kernarg_size 96", "  .amdhsa_user_sgpr_count 2",
            "  .amdhsa_user_sgpr_kernarg_segment_ptr 1", "  .amdhsa_system_sgpr_workgroup_id_x 1",
            "  .amdhsa_float_denorm_mode_32 3", "  .amdhsa_float_denorm_mode_16_64 3", ".end_amdhsa_kernel"]
    return "\n".join(hdr + lines + desc) + "\n"

if __name__ == "__main__":
    out = sys.argv[1]
    for a_ in sys.argv[2:]:
        if a_ == "prof": cfg.prof = True
        if a_ == "dbg": cfg.prof = True; cfg.dbgstamps = True
        if a_ == "lprof": cfg.lprof = True
        if a_ == "cyc": cfg.cyc = True
        if a_.startswith("wtail="): cfg.wtail = [int(x) for x in a_[6:].split(",")]
        if a_.startswith("wepi="): cfg.wepi = int(a_[5:])
        if a_.startswith("hpre="): cfg.hpre = int(a_[5:])
        if a_ == "outwt": cfg.outsc = SC
        if a_.startswith("per2="): cfg.per2 = int(a_[5:])
        if a_ == "nokrot": cfg.krot = False
        if a_.startswith("wrotx="): cfg.wrotx = int(a_[6:])
        if a_.startswith("hpub="): cfg.hpub = int(a_[5:])
    open(out, "w").write(build()); print("wrote", out)
```

```python
import sys
from asmlib import *

KN = "recurrent_scan__ssm_conv_h3__dense_activation_relu__prompt"
WS_ST = 0x000000; WS_KVT = 0x200000; WS_H = 0x400000; WS_Y2 = 0xA00000
WS_FLAG = 0xC00000; WS_PROF = 0xD00000; WS_W2F = 0xE00000
FL_P = 0x1000; FL_H = 0x9000; FL_Y = 0x11000

S_WV = 3; S_XCD = 4; S_J = 5; S_CL = 6; S_MEM = 7
P_Q, P_K, P_V, P_SK, P_SSMK, P_D, P_BX, P_W1 = 24, 26, 28, 30, 32, 34, 36, 38
P_W2, P_OUT, P_DBG, P_WS = 40, 42, 44, 46
S_ROT = 57; S_CH0 = 58; S_UNIT0 = 59; S_NONCE = 60; S_E = 61; S_WPOS = 62; S_NU = 63
S_W2U = 64; S_TB64 = 65; S_CB = 66; S_U0 = 67
S_ST = 68; S_XS = 69; S_WS_ = 70; S_DV = 71
S_ROW = 56

NSLOT = 4
XR = 0; WR = NSLOT * 16384
TOEP = NSLOT * 28672; CS = 4160
UB = TOEP + 33280
KVT_T = UB
CSB = UB + 9216
LDS_TOTAL = CSB + 3072
W2S = 49152
CVX = 0; RED = 0; YB = 69632

class Cfg:
    prof = False; dbgstamps = False; lprof = False; cyc = False
    wtail = [10, 0, 0, 0, 0, 0]; wepi = 2; hpre = 10; outsc = ""; per2 = 5; hpub = 1; wr3 = True; krot = True; wrotx = 0; cpf = True
cfg = Cfg()
NST = [0]
SC = "sc0 sc1"; SCL = "sc1"
_lbl = [0]
def newlabel(p):
    _lbl[0] += 1
    return "L_%s_%d" % (p, _lbl[0])

class G(Asm):
    def __init__(self):
        super().__init__(); self.vm = []
    def vmop(self, line, tag, certain=True):
        self(line)
        if certain: self.vm.append(tag)
    def tag(self, tag, n=1):
        self.vm += [tag] * n
    def cnt(self, tag):
        idx = max(i for i, t in enumerate(self.vm) if t == tag)
        return len(self.vm) - 1 - idx
    def wait(self, tag, lgkm=None):
        c = min(63, self.cnt(tag))
        self("s_waitcnt vmcnt(%d)%s" % (c, "" if lgkm is None else " lgkmcnt(%d)" % lgkm))

class Sub(Asm):
    def ins(self): return [l.strip() for l in self.lines]

class V:
    def __init__(self, text, tag=None, n=0): self.text = text; self.tag = tag; self.n = n
def emit(A, x):
    if isinstance(x, V):
        A(x.text)
        if x.tag: A.tag(x.tag, x.n)
    else: A(x)

def stamp(A):
    if not cfg.prof: return
    i = NST[0]; NST[0] += 1
    assert i < 12, "too many stamps"
    A("%s s[%d:%d]" % ("s_memtime" if cfg.cyc else "s_memrealtime", 72 + 2 * i, 73 + 2 * i))

def srd(A, d, ptr, nbytes, off=0):
    if off:
        A("s_add_u32 s%d, s%d, 0x%x" % (d, ptr, off)); A("s_addc_u32 s%d, s%d, 0" % (d + 1, ptr + 1))
    else:
        A("s_mov_b32 s%d, s%d" % (d, ptr)); A("s_mov_b32 s%d, s%d" % (d + 1, ptr + 1))
    A("s_mov_b32 s%d, 0x%x" % (d + 2, nbytes)); A("s_mov_b32 s%d, 0x20000" % (d + 3))
def srd_s(A, d, soff, nbytes, base=P_WS):
    A("s_add_u32 s%d, s%d, s%d" % (d, base, soff)); A("s_addc_u32 s%d, s%d, 0" % (d + 1, base + 1))
    A("s_mov_b32 s%d, 0x%x" % (d + 2, nbytes)); A("s_mov_b32 s%d, 0x20000" % (d + 3))

def unpack(A, dst, src, n):
    for i in range(n):
        A("v_lshlrev_b32 v%d, 16, v%d" % (dst + 2 * i, src + i))
        A("v_and_b32 v%d, 0xffff0000, v%d" % (dst + 2 * i + 1, src + i))
def bf16_round(A, dst, src):
    A("v_cvt_pk_bf16_f32 v%d, v%d, v%d" % (dst, src, src))
    A("v_and_b32 v%d, 0xffff0000, v%d" % (dst, dst))
def pk(A, op, d, a, b, c=None, mod=""):
    if c is None: A("%s v[%d:%d], v[%d:%d], v[%d:%d] %s" % (op, d, d + 1, a, a + 1, b, b + 1, mod))
    else: A("%s v[%d:%d], v[%d:%d], v[%d:%d], v[%d:%d] %s" % (op, d, d + 1, a, a + 1, b, b + 1, c, c + 1, mod))
NEG1 = "neg_lo:[0,1] neg_hi:[0,1]"
def wave_reduce(A, vs, sdst):
    steps = ["row_shr:1 row_mask:0xf bank_mask:0xf bound_ctrl:0", "row_shr:2 row_mask:0xf bank_mask:0xf bound_ctrl:0",
             "row_shr:4 row_mask:0xf bank_mask:0xf bound_ctrl:0", "row_shr:8 row_mask:0xf bank_mask:0xf bound_ctrl:0",
             "row_bcast:15 row_mask:0xa bank_mask:0xf", "row_bcast:31 row_mask:0xc bank_mask:0xf"]
    for st in steps:
        for r in vs: A("v_add_f32_dpp v%d, v%d, v%d %s" % (r, r, r, st))
    for r, d in zip(vs, sdst): A("v_readlane_b32 s%d, v%d, 63" % (d, r))

def spread(A, main, side):
    n = len(main); m = len(side); k = 0
    for i, l in enumerate(main):
        emit(A, l)
        tgt = (m * (i + 1)) // n
        while k < tgt: emit(A, side[k]); k += 1
    while k < m: emit(A, side[k]); k += 1

def weave2(A, mf, rd, side, per=3):
    n = len(mf); k = 0; j = 0
    for i, m in enumerate(mf):
        A(m)
        for _ in range(per):
            if k < len(rd): emit(A, rd[k]); k += 1
        tgt = (len(side) * (i + 1)) // n
        while j < tgt: emit(A, side[j]); j += 1
    while k < len(rd): emit(A, rd[k]); k += 1
    while j < len(side): emit(A, side[j]); j += 1

def flag_store(A, fl_off):
    L = newlabel("pub")
    A("s_cmp_lg_u32 s%d, 0" % S_WV)
    A("s_cbranch_scc1 %s" % L)
    A("s_lshl_b32 s48, s%d, 5" % S_XCD)
    A("s_add_u32 s48, s48, s%d" % S_J)
    A("s_lshl_b32 s48, s48, 7")
    A("s_add_u32 s48, s48, 0x%x" % (WS_FLAG + fl_off))
    A("v_mov_b32 v2, s48")
    A("v_mov_b32 v3, s%d" % S_NONCE)
    A("s_mov_b64 exec, 1")
    A("global_store_dword v2, v3, s[%d:%d] %s" % (P_WS, P_WS + 1, SC))
    A("s_mov_b64 exec, -1")
    A.label(L)

def poll_addr(A, va, fl_off, grp_sreg, stride=1, first_sreg=None):
    A("s_lshl_b32 s48, s%d, 5" % grp_sreg)
    if first_sreg is not None: A("s_add_u32 s48, s48, s%d" % first_sreg)
    if stride == 1: A("v_add_u32 v%d, s48, v1" % va)
    else:
        A("v_mul_u32_u24 v%d, %d, v1" % (va, stride)); A("v_add_u32 v%d, s48, v%d" % (va, va))
    A("v_lshlrev_b32 v%d, 7, v%d" % (va, va))
    A("v_add_u32 v%d, 0x%x, v%d" % (va, WS_FLAG + fl_off, va))
def poll_issue(A, va, vd, nlanes, tag):
    A("s_mov_b64 exec, 0x%x" % ((1 << nlanes) - 1))
    A.vmop("global_load_dword v%d, v%d, s[%d:%d] %s" % (vd, va, P_WS, P_WS + 1, SCL), tag)
    A("s_mov_b64 exec, -1")
def poll_check(A, va, vd, nlanes):
    L = newlabel("poll"); D = newlabel("polld")
    A("s_mov_b64 exec, 0x%x" % ((1 << nlanes) - 1))
    A("v_cmp_ne_u32 vcc, s%d, v%d" % (S_NONCE, vd))
    A("s_mov_b32 s55, 0")
    A("s_cbranch_vccz %s" % D)
    A.label(L)
    A("s_sleep 1")
    A("global_load_dword v%d, v%d, s[%d:%d] %s" % (vd, va, P_WS, P_WS + 1, SCL))
    A("s_waitcnt vmcnt(0)")
    A("v_cmp_ne_u32 vcc, s%d, v%d" % (S_NONCE, vd))
    A("s_add_u32 s55, s55, 1")
    A("s_cbranch_vccz %s" % D)
    A("s_cmp_lt_u32 s55, 200000")
    A("s_cbranch_scc1 %s" % L)
    A.label(D)
    A("s_mov_b64 exec, -1")

KR = 16; VR = 30; WR_ = 38; X0 = 48; X1 = 52; VCQ = 56; VRQ = 57; VXO = 58
G1_ACC = 16; G1_SET = [64, 96]
G1_XA = 128; G1_WA = 132; G1_XE, G1_XO, G1_WM = 136, 137, 138
WLA = 143; G1_ONES = 144; UL = 148; UA = 156; STV = 14; PB = 160
TPH = 240; TPA = 252
CV_AA = 8; CV_BA = 9
CSA = 176
FN_YG, FN_YL, FN_XO, FN_ST, FN_RD, FN_YR = 4, 5, 7, 6, 10, 11
FN_RW = 12

def prologue(A, name):
    A.raw(".globl %s" % name); A.raw(".p2align 8"); A.raw(".type %s,@function" % name)
    A.label(name)
    A("s_cmp_ge_u32 s2, 256")
    A("s_cbranch_scc1 L_end")
    A("s_load_dwordx16 s[24:39], s[0:1], 0")
    A("s_load_dwordx8 s[40:47], s[0:1], 64")
    if cfg.cpf:
        A("s_getpc_b64 s[48:49]")
        A.label("L_pc")
        A("s_sub_u32 s48, s48, L_pc-%s" % name)
        A("s_subb_u32 s49, s49, 0")
        A("v_lshlrev_b32 v2, 7, v0")
        A("v_cmp_gt_u32 vcc, L_end-%s+128, v2" % name)
        A("s_and_saveexec_b64 s[50:51], vcc")
        A("s_cbranch_execz L_nopf")
        A.vmop("global_load_dword v3, v2, s[48:49]", "cpf")
        A.label("L_nopf")
        A("s_mov_b64 exec, s[50:51]")
    stamp(A)
    if cfg.prof: A("s_memtime s[98:99]")
    A("v_lshrrev_b32 v1, 6, v0")
    A("s_and_b32 s%d, s2, 7" % S_XCD)
    A("s_lshr_b32 s%d, s2, 3" % S_J)
    A("v_readfirstlane_b32 s%d, v1" % S_WV)
    A("v_and_b32 v1, 63, v0")
    A("s_and_b32 s%d, s%d, 1" % (S_CL, S_J))
    A("s_lshl_b32 s48, s%d, 1" % S_XCD)
    A("s_add_u32 s%d, s%d, s48" % (S_CL, S_CL))
    A("s_lshr_b32 s%d, s%d, 1" % (S_MEM, S_J))
    A("s_lshl_b32 s48, s%d, 6" % S_XCD)
    A("s_lshl_b32 s49, s%d, 1" % S_J)
    A("s_add_u32 s%d, s48, s49" % S_CH0)
    A("v_and_b32 v%d, 15, v0" % VCQ)
    A("v_lshrrev_b32 v%d, 4, v0" % VRQ)
    A("s_lshl_b32 s51, s%d, 6" % S_J)
    A("v_lshlrev_b32 v60, 2, v%d" % VRQ)
    A("v_add_u32 v60, s51, v60")
    A("v_lshlrev_b32 v60, 10, v60")
    A("v_lshl_add_u32 v60, v%d, 3, v60" % VCQ)
    A("s_lshl_b32 s52, s%d, 7" % S_XCD)
    A("v_add_u32 v60, s52, v60")
    for r in range(7):
        if r != 3: A("v_add_u32 v%d, %d, v60" % (61 + r, ((r - 3) * 1024) & 0xffffffff))
    A("v_lshlrev_b32 v%d, 4, v1" % VXO)
    A("s_lshl_b32 s48, s%d, 7" % S_CL)
    A("s_lshl_b32 s49, s%d, 3" % S_MEM)
    A("s_add_u32 s48, s48, s49")
    A("s_lshl_b32 s49, s%d, 1" % S_WV)
    A("s_add_u32 s%d, s48, s49" % S_ROW)
    A("s_lshl_b32 s50, s%d, 10" % S_ROW)
    A("v_lshlrev_b32 v68, 5, v%d" % VCQ)
    A("s_lshl_b32 s53, s%d, 9" % S_XCD)
    A("s_waitcnt lgkmcnt(0)")
    srd(A, 12, P_K, 0x200000); srd(A, 16, P_V, 0x200000)
    for r in range(7):
        A.vmop("buffer_load_dwordx2 v[%d:%d], v%d, s[12:15], 0 offen" % (KR + 2 * r, KR + 2 * r + 1, 60 if r == 3 else 61 + r), "kv")
    srd(A, 20, P_SK, 4096)
    for r in range(4):
        A.vmop("buffer_load_dwordx2 v[%d:%d], v60, s[16:19], 0 offen offset:%d" % (VR + 2 * r, VR + 2 * r + 1, 1024 * r), "kv")
    srd(A, 8, P_Q, 0x200000)
    A.vmop("buffer_load_dwordx4 v[%d:%d], v68, s[20:23], s53 offen" % (WR_, WR_ + 3), "kv")
    A.vmop("buffer_load_dwordx4 v[%d:%d], v68, s[20:23], s53 offen offset:16" % (WR_ + 4, WR_ + 7), "kv")
    A.vmop("buffer_load_dwordx4 v[%d:%d], v%d, s[8:11], s50 offen" % (X0, X0 + 3, VXO), "x")
    A.vmop("buffer_load_dwordx4 v[%d:%d], v%d, s[8:11], s50 offen offset:1024" % (X1, X1 + 3, VXO), "x")
    A("s_mul_i32 s%d, s%d, 3" % (S_UNIT0, S_MEM))
    A("s_lshl_b32 s48, s%d, 1" % S_MEM)
    A("s_add_u32 s48, s48, 11")
    A("s_cmp_lt_u32 s%d, 11" % S_MEM)
    A("s_cselect_b32 s%d, s%d, s48" % (S_UNIT0, S_UNIT0))
    A("s_and_b32 s%d, s%d, 1" % (S_TB64, S_MEM))
    A("s_lshl_b32 s48, s%d, 1" % S_CL)
    A("s_add_u32 s%d, s%d, s48" % (S_TB64, S_TB64))
    A("s_lshr_b32 s%d, s%d, 1" % (S_CB, S_MEM))
    A("s_mul_i32 s%d, s%d, 22" % (S_U0, S_WV))
    A("s_and_b32 s48, s%d, 1" % S_J)
    A("s_lshl_b32 s48, s48, 1")
    A("s_and_b32 s49, s%d, 1" % S_MEM)
    A("s_add_u32 s48, s48, s49")
    A("s_mul_i32 s48, s48, 5")
    A("s_mul_i32 s49, s%d, 3" % S_CB)
    A("s_add_u32 s48, s48, s49")
    if cfg.wrotx:
        A("s_mul_i32 s49, s%d, %d" % (S_XCD, cfg.wrotx))
        A("s_add_u32 s48, s48, s49")
    for _ in range(3 if cfg.wrotx else 1):
        A("s_sub_u32 s49, s48, 20")
        A("s_cmp_ge_u32 s48, 20")
        A("s_cselect_b32 s48, s49, s48")
    A("s_mov_b32 s%d, s48" % S_ROT)
    A("s_cmp_eq_u32 s%d, 3" % S_WV)
    A("s_cselect_b32 s%d, 20, 22" % S_NU)
    srd(A, 20, P_W2, 1376 * 512 * 2)
    A("v_lshrrev_b32 v70, 3, v1")
    A("v_lshlrev_b32 v70, 11, v70")
    A("v_and_b32 v71, 7, v1")
    A("v_lshl_add_u32 v70, v71, 4, v70")
    A("s_lshl_b32 s48, s%d, 7" % S_XCD)
    A("v_add_u32 v70, s48, v70")
    A("v_xor_b32 v71, 64, v70")
    A("s_lshl_b32 s48, s%d, 5" % S_WV)
    A("s_add_u32 s%d, s48, s%d" % (S_W2U, S_J))
    A("s_lshl_b32 s49, s%d, 14" % S_W2U)
    A("s_lshl_b32 s48, s%d, 11" % S_WV)
    A("s_add_u32 s48, s48, %d" % W2S)
    A("s_mov_b32 m0, s48")
    A("s_nop 0")
    A.vmop("buffer_load_dwordx4 v70, s[20:23], s49 offen lds", "w2u")
    A.vmop("buffer_load_dwordx4 v71, s[20:23], s49 offen offset:1024 lds", "w2u")
    A("v_lshlrev_b32 v%d, 4, v0" % TPA)
    toep_loads(A)
    A("s_add_u32 s48, s%d, 0x%x" % (P_WS, WS_FLAG)); A("s_addc_u32 s49, s%d, 0" % (P_WS + 1))
    A("s_load_dword s%d, s[48:49], 0" % S_E)
    A("s_lshl_b32 s50, s%d, 1" % S_CH0)
    A("s_add_u32 s52, s%d, s50" % P_D); A("s_addc_u32 s53, s%d, 0" % (P_D + 1))
    A("s_load_dword s%d, s[52:53], 0" % S_DV)

def addr_setup(A):
    T = 72
    srd(A, 16, P_Q, 0x200000)
    srd(A, 20, P_W1, 512 * 1376 * 2)
    A("v_lshrrev_b32 v%d, 3, v1" % T)
    A("v_and_b32 v%d, 7, v1" % (T + 1))
    A("v_lshrrev_b32 v%d, 1, v%d" % (T + 2, T))
    A("v_xor_b32 v%d, v%d, v%d" % (T + 1, T + 1, T + 2))
    A("s_lshl_b32 s48, s%d, 7" % S_CL)
    A("s_lshl_b32 s49, s%d, 5" % S_WV)
    A("s_add_u32 s48, s48, s49")
    A("v_lshlrev_b32 v%d, 2, v%d" % (T, T))
    A("v_add_u32 v%d, s48, v%d" % (T, T))
    A("v_lshlrev_b32 v%d, 10, v%d" % (T, T))
    A("v_lshl_add_u32 v%d, v%d, 4, v%d" % (G1_XE, T + 1, T))
    A("v_xor_b32 v%d, 64, v%d" % (G1_XO, G1_XE))
    A("s_mul_i32 s48, s%d, 192" % S_WV)
    A("s_lshl_b32 s49, s%d, 6" % S_UNIT0)
    A("s_mov_b32 s54, 43691")
    for m in range(3):
        A("v_add_u32 v%d, s48, v1" % T)
        if m: A("v_add_u32 v%d, %d, v%d" % (T, 64 * m, T))
        A("v_mul_lo_u32 v%d, v%d, s54" % (T + 1, T))
        A("v_lshrrev_b32 v%d, 19, v%d" % (T + 1, T + 1))
        A("v_mul_u32_u24 v%d, 12, v%d" % (T + 2, T + 1))
        A("v_sub_u32 v%d, v%d, v%d" % (T + 2, T, T + 2))
        A("v_mul_u32_u24 v%d, 2752, v%d" % (T + 1, T + 1))
        A("v_lshl_add_u32 v%d, v%d, 4, v%d" % (T + 1, T + 2, T + 1))
        A("v_add_u32 v%d, s49, v%d" % (T + 1, T + 1))
        if m: A("v_subrev_u32 v%d, %d, v%d" % (G1_WM + m, 1024 * m, T + 1))
        else: A("v_mov_b32 v%d, v%d" % (G1_WM, T + 1))
    A("s_mov_b32 s%d, 0" % S_ST); A("s_mov_b32 s%d, 0" % S_XS); A("s_mov_b32 s%d, 0" % S_WS_)

def addr_setup2(A):
    T = 72
    A("v_and_b32 v%d, 31, v1" % T)
    A("v_lshrrev_b32 v%d, 5, v1" % (T + 1))
    A("v_bfe_u32 v%d, v1, 1, 3" % (T + 2))
    A("v_xor_b32 v%d, v%d, v%d" % (T + 2, T + 2, T + 1))
    A("s_lshl_b32 s48, s%d, 12" % S_WV)
    A("v_lshlrev_b32 v%d, 7, v%d" % (T, T))
    A("v_add_u32 v%d, s48, v%d" % (T, T))
    A("v_bfe_u32 v%d, v1, 2, 2" % (T + 4))
    A("v_lshl_add_u32 v%d, v%d, 3, v%d" % (T + 4, T + 1, T + 4))
    A("v_mul_u32_u24 v%d, 192, v%d" % (T + 4, T + 4))
    A("v_bfe_u32 v%d, v1, 4, 1" % (T + 5))
    A("v_lshl_add_u32 v%d, v%d, 5, v%d" % (T + 4, T + 5, T + 4))
    A("v_and_b32 v%d, 3, v1" % (T + 5))
    A("v_lshl_add_u32 v%d, v%d, 3, v%d" % (T + 4, T + 5, T + 4))
    A("v_add_u32 v%d, %d, v%d" % (T + 4, WR, T + 4))
    for p in range(4):
        A("s_add_u32 s48, s%d, %d" % (S_WV, p))
        A("s_and_b32 s48, s48, 3")
        A("s_lshl_b32 s49, s48, 1")
        A("v_xor_b32 v%d, s49, v%d" % (T + 3, T + 2))
        A("v_lshl_add_u32 v%d, v%d, 4, v%d" % (G1_XA + p, T + 3, T))
        A("s_mul_i32 s49, s48, 3072")
        A("v_add_u32 v%d, s49, v%d" % (G1_WA + p, T + 4))
    for i in range(4): A("v_mov_b32 v%d, 0x3f803f80" % (G1_ONES + i))
    A("v_lshlrev_b32 v%d, 4, v1" % WLA)
    A("v_lshlrev_b32 v%d, 4, v0" % UA)
    A("s_lshr_b32 s48, s%d, 1" % S_WV)
    A("s_and_b32 s49, s%d, 1" % S_WV)
    A("v_and_b32 v%d, 15, v1" % T)
    A("v_lshrrev_b32 v%d, 4, v1" % (T + 1))
    A("v_add_u32 v%d, 1, v%d" % (T + 2, T))
    A("v_and_b32 v%d, 3, v%d" % (T + 3, T + 2))
    A("v_mul_u32_u24 v%d, %d, v%d" % (T + 3, CS, T + 3))
    A("v_lshrrev_b32 v%d, 2, v%d" % (T + 2, T + 2))
    A("v_lshl_add_u32 v%d, v%d, 3, v%d" % (T + 3, T + 2, T + 3))
    A("v_lshl_add_u32 v%d, v%d, 4, v%d" % (T + 3, T + 1, T + 3))
    A("s_mul_i32 s50, s48, 16640")
    A("s_lshl_b32 s51, s49, 8")
    A("s_add_u32 s50, s50, s51")
    A("s_add_u32 s50, s50, %d" % TOEP)
    A("v_add_u32 v%d, s50, v%d" % (CV_AA, T + 3))
    A("s_mul_i32 s50, s48, 4608")
    A("s_add_u32 s50, s50, s51")
    A("s_add_u32 s50, s50, %d" % (UB + 480))
    A("v_lshlrev_b32 v%d, 5, v%d" % (T + 2, T))
    A("v_sub_u32 v%d, s50, v%d" % (T + 2, T + 2))
    A("v_lshl_add_u32 v%d, v%d, 4, v%d" % (CV_BA, T + 1, T + 2))
    A("v_lshrrev_b32 v%d, 4, v0" % T)
    A("v_and_b32 v%d, 15, v0" % (T + 1))
    A("v_lshlrev_b32 v%d, 13, v%d" % (FN_YG, T))
    A("v_lshl_add_u32 v%d, v%d, 4, v%d" % (FN_YG, T + 1, FN_YG))
    A("v_mul_u32_u24 v%d, 272, v%d" % (FN_YL, T))
    A("v_lshl_add_u32 v%d, v%d, 4, v%d" % (FN_YL, T + 1, FN_YL))
    A("v_add_u32 v%d, %d, v%d" % (FN_YL, YB, FN_YL))
    A("v_lshrrev_b32 v%d, 3, v0" % T)
    A("v_and_b32 v%d, 7, v%d" % (T + 1, T))
    A("v_lshlrev_b32 v%d, 2, v%d" % (T + 1, T + 1))
    A("v_lshrrev_b32 v%d, 3, v%d" % (T + 2, T))
    A("v_add_u32 v%d, v%d, v%d" % (T + 1, T + 1, T + 2))
    A("v_and_b32 v%d, 7, v0" % (T + 2))
    A("v_lshlrev_b32 v%d, 10, v%d" % (FN_XO, T + 1))
    A("v_lshl_add_u32 v%d, v%d, 4, v%d" % (FN_XO, T + 2, FN_XO))
    A("v_lshlrev_b32 v%d, 3, v%d" % (FN_ST, T + 1))
    A("v_mul_u32_u24 v%d, 272, v%d" % (FN_RD, T))
    A("v_lshl_add_u32 v%d, v%d, 5, v%d" % (FN_RD, T + 2, FN_RD))
    A("v_mul_u32_u24 v%d, %d, v%d" % (FN_YR, 4 * 272, T + 2))
    A("v_lshl_add_u32 v%d, v%d, 2, v%d" % (FN_YR, T + 1, FN_YR))
    A("v_add_u32 v%d, %d, v%d" % (FN_YR, YB, FN_YR))
    A("v_and_b32 v%d, 31, v1" % T)
    A("v_mul_u32_u24 v%d, 272, v%d" % (T, T))
    A("v_lshrrev_b32 v%d, 5, v1" % (T + 1))
    A("v_lshl_add_u32 v%d, v%d, 4, v%d" % (T, T + 1, T))
    A("s_mul_i32 s48, s%d, 17408" % S_WV)
    A("v_add_u32 v%d, s48, v%d" % (FN_RW, T))

def g1_dma(stage):
    slot = stage % NSLOT
    if cfg.krot:
        sl = "s_add_u32 s49, s%d, %d\ns_and_b32 s49, s49, 7\n" % (S_XCD, stage)
        xo = sl + "s_lshl_b32 s49, s49, 7"; wo = sl + "s_mul_i32 s49, s49, 176128"
    else:
        xo = "s_movk_i32 s49, %d" % (128 * stage); wo = "s_mov_b32 s49, %d" % (176128 * stage)
    x = ["s_lshl_b32 s48, s%d, 12" % S_WV, "s_add_u32 s48, s48, %d" % (XR + slot * 16384), "s_mov_b32 m0, s48", xo]
    for i in range(4):
        x.append(V("buffer_load_dwordx4 v%d, s[16:19], s49 offen offset:%d lds" % (G1_XE if i % 2 == 0 else G1_XO, 1024 * i), "D%d" % stage, 1))
    w = ["s_mul_i32 s50, s%d, 3072" % S_WV, "s_add_u32 s50, s50, %d" % (WR + slot * 12288), "s_mov_b32 m0, s50", wo]
    for m in range(3):
        w.append(V("buffer_load_dwordx4 v%d, s[20:23], s49 offen offset:%d lds" % (G1_WM + m, 1024 * m), "D%d" % stage, 1))
    return x, w

def toep_loads(A):
    A("s_lshl_b32 s55, s%d, 12" % S_CH0)
    for ch in range(2):
        d = 8 + 4 * ch
        A("s_add_u32 s%d, s%d, s55" % (d, P_SSMK)); A("s_addc_u32 s%d, s%d, 0" % (d + 1, P_SSMK + 1))
        if ch == 1:
            A("s_add_u32 s%d, s%d, 4096" % (d, d)); A("s_addc_u32 s%d, s%d, 0" % (d + 1, d + 1))
        A("s_mov_b32 s%d, 4096" % (d + 2)); A("s_mov_b32 s%d, 0x20000" % (d + 3))
    for ch in range(2):
        d = 8 + 4 * ch; b = TPH + 6 * ch
        A.vmop("buffer_load_dwordx4 v[%d:%d], v%d, s[%d:%d], 0 offen" % (b, b + 3, TPA, d, d + 3), "toep")
        A.vmop("buffer_load_dwordx2 v[%d:%d], v%d, s[%d:%d], 0 offen offset:16" % (b + 4, b + 5, TPA, d, d + 3), "toep")

def prep(A):
    addr_setup(A)
    x, w = g1_dma(0)
    for l in x + w: emit(A, l)
    addr_setup2(A)
    A.wait("kv")
    stamp(A)
    M = Sub()
    KF = 160; VF = 188; WF = 204; AC = 220; PK = 64
    for r in range(7): unpack(M, KF + 4 * r, KR + 2 * r, 2)
    for c in range(4):
        M("v_lshlrev_b32 v%d, 16, v%d" % (WF + 0 + c, WR_ + 2 * c))
        M("v_and_b32 v%d, 0xffff0000, v%d" % (WF + 4 + c, WR_ + 2 * c))
        M("v_lshlrev_b32 v%d, 16, v%d" % (WF + 8 + c, WR_ + 2 * c + 1))
        M("v_and_b32 v%d, 0xffff0000, v%d" % (WF + 12 + c, WR_ + 2 * c + 1))
    for r in range(4): unpack(M, VF + 4 * r, VR + 2 * r, 2)
    for o in range(4):
        for h in range(2): pk(M, "v_pk_mul_f32", AC + 4 * o + 2 * h, KF + 4 * o + 2 * h, WF + 12 + 2 * h)
    for j in (2, 1, 0):
        for o in range(4):
            for h in range(2): pk(M, "v_pk_fma_f32", AC + 4 * o + 2 * h, KF + 4 * (3 + o - j) + 2 * h, WF + 4 * j + 2 * h, AC + 4 * o + 2 * h)
    for o in range(4):
        for h in range(2): pk(M, "v_pk_mul_f32", AC + 4 * o + 2 * h, AC + 4 * o + 2 * h, VF + 4 * o + 2 * h)
    for c in range(4):
        M("v_cvt_pk_bf16_f32 v%d, v%d, v%d" % (PK + 2 * c, AC + 12 + c, AC + 8 + c))
        M("v_cvt_pk_bf16_f32 v%d, v%d, v%d" % (PK + 2 * c + 1, AC + 4 + c, AC + c))
    VP, VA = 78, 79
    M("v_sub_u32 v%d, 15, v%d" % (VP, VRQ))
    M("v_lshrrev_b32 v%d, 1, v%d" % (VA, VP))
    M("v_and_b32 v%d, 7, v%d" % (VA + 1, VCQ))
    M("v_xor_b32 v%d, v%d, v%d" % (VA, VA, VA + 1))
    M("v_lshlrev_b32 v%d, 4, v%d" % (VA, VA))
    M("v_and_b32 v%d, 1, v%d" % (VP, VP))
    M("v_lshl_add_u32 v%d, v%d, 3, v%d" % (VA, VP, VA))
    M("v_lshl_add_u32 v%d, v%d, 9, v%d" % (VA, VCQ, VA))
    M("v_add_u32 v%d, %d, v%d" % (VA, KVT_T, VA))
    for c in range(4): M("ds_write_b64 v%d, v[%d:%d] offset:%d" % (VA, PK + 2 * c, PK + 2 * c + 1, 128 * c))
    for l in M.ins(): A(l)
    a_, b_ = prep_tail_items()
    A("s_waitcnt lgkmcnt(0)")
    A("s_barrier")
    for l in a_: A(l)
    A("s_waitcnt lgkmcnt(0)")
    for l in b_: emit(A, l)
    A.wait("x")
    M = Sub()
    U0, U1 = 84, 92
    unpack(M, U0, X0, 4); unpack(M, U1, X1, 4)
    R0, R1 = 100, 102
    for (U, R) in ((U0, R0), (U1, R1)): pk(M, "v_pk_add_f32", R, U, U + 2)
    for i in (4, 6):
        for (U, R) in ((U0, R0), (U1, R1)): pk(M, "v_pk_add_f32", R, R, U + i)
    for (U, R) in ((U0, R0), (U1, R1)): M("v_add_f32 v%d, v%d, v%d" % (R, R, R + 1))
    wave_reduce(M, [R0, R1], [54, 55])
    M("s_mov_b32 s52, 0x3b000000")
    M0_, M1_ = 104, 106
    M("v_mov_b32 v%d, s54" % M0_); M("v_mov_b32 v%d, s55" % M1_)
    M("v_mul_f32 v%d, s52, v%d" % (M0_, M0_)); M("v_mul_f32 v%d, s52, v%d" % (M1_, M1_))
    M("v_mov_b32 v%d, v%d" % (M0_ + 1, M0_)); M("v_mov_b32 v%d, v%d" % (M1_ + 1, M1_))
    for i in range(0, 8, 2):
        for (U, Mm) in ((U0, M0_), (U1, M1_)): pk(M, "v_pk_add_f32", U + i, U + i, Mm, None, NEG1)
    for (D, R) in ((U0, R0), (U1, R1)): pk(M, "v_pk_mul_f32", R, D, D)
    for i in (2, 4, 6):
        for (D, R) in ((U0, R0), (U1, R1)): pk(M, "v_pk_fma_f32", R, D + i, D + i, R)
    for (D, R) in ((U0, R0), (U1, R1)): M("v_add_f32 v%d, v%d, v%d" % (R, R, R + 1))
    wave_reduce(M, [R0, R1], [54, 55])
    M("v_mov_b32 v%d, s54" % R0); M("v_mov_b32 v%d, s55" % R1)
    M("s_mov_b32 s53, 0x3727c5ac")
    RR = ((R0, M0_), (R1, M1_))
    for (R, Mm) in RR: M("v_mul_f32 v%d, s52, v%d" % (R, R))
    for (R, Mm) in RR: bf16_round(M, R, R)
    for (R, Mm) in RR: M("v_add_f32 v%d, s53, v%d" % (R, R))
    for (R, Mm) in RR: bf16_round(M, R, R)
    for (R, Mm) in RR: M("v_sqrt_f32 v%d, v%d" % (R, R))
    for (R, Mm) in RR: bf16_round(M, Mm, Mm)
    for (R, Mm) in RR: bf16_round(M, R, R)
    for (R, Mm) in RR: M("v_rcp_f32 v%d, v%d" % (R, R))
    ST4 = 108
    M("v_mov_b32 v%d, v%d" % (ST4, M0_)); M("v_mov_b32 v%d, v%d" % (ST4 + 2, M1_))
    M("v_mov_b32 v%d, v%d" % (ST4 + 1, R0)); M("v_mov_b32 v%d, v%d" % (ST4 + 3, R1))
    x, w = g1_dma(1)
    spread(A, M.ins(), x + w)
    T = 118
    A("v_bfe_u32 v%d, v1, 2, 1" % T)
    A("v_lshlrev_b32 v%d, 10, v%d" % (T + 1, T))
    A("v_lshrrev_b32 v%d, 5, v1" % (T + 2))
    A("v_lshl_add_u32 v%d, v%d, 8, v%d" % (T + 1, T + 2, T + 1))
    A("v_bfe_u32 v%d, v1, 3, 1" % (T + 2))
    A("v_lshl_add_u32 v%d, v%d, 7, v%d" % (T + 1, T + 2, T + 1))
    A("v_bfe_u32 v%d, v1, 4, 1" % (T + 2))
    A("v_lshlrev_b32 v%d, 1, v%d" % (T + 2, T + 2))
    A("v_bfe_u32 v%d, v1, 1, 1" % (T + 3))
    A("v_add_u32 v%d, v%d, v%d" % (T + 2, T + 2, T + 3))
    A("v_lshl_add_u32 v%d, v%d, 2, v%d" % (T + 2, T, T + 2))
    A("v_lshl_add_u32 v%d, v%d, 4, v%d" % (T + 1, T + 2, T + 1))
    A("v_and_b32 v%d, 1, v1" % (T + 2))
    A("v_lshl_add_u32 v%d, v%d, 3, v%d" % (T + 1, T + 2, T + 1))
    A("s_lshl_b32 s48, s%d, 11" % S_WV)
    A("s_add_u32 s48, s48, %d" % W2S)
    A("v_add_u32 v%d, s48, v%d" % (T + 4, T + 1))
    A("v_xor_b32 v%d, 64, v%d" % (T + 5, T + 4))
    x, w = g1_dma(2)
    for l in x + w: emit(A, l)
    A.wait("w2u")
    WQ = 64
    for dt in range(2):
        for h in range(2):
            b = WQ + 4 * dt + 2 * h
            A("ds_read_b64_tr_b16 v[%d:%d], v%d offset:%d" % (b, b + 1, T + 4 + dt, 512 * h))
    A("s_mul_i32 s48, s%d, %d" % (S_XCD, 86 * 2048))
    A("s_add_u32 s48, s48, 0x%x" % WS_W2F)
    srd_s(A, 12, 48, 86 * 2048)
    A("s_lshl_b32 s48, s%d, 11" % S_W2U)
    A("v_lshlrev_b32 v%d, 4, v1" % T)
    A("s_waitcnt lgkmcnt(0)")
    A.vmop("buffer_store_dwordx4 v[%d:%d], v%d, s[12:15], s48 offen %s" % (WQ, WQ + 3, T, SC), "pst")
    A.vmop("buffer_store_dwordx4 v[%d:%d], v%d, s[12:15], s48 offen offset:1024 %s" % (WQ + 4, WQ + 7, T, SC), "pst")
    A.wait("toep")
    for l in toeplitz_lines(): A(l)
    toeplitz_head(A)
    A.wait("D0", 0)
    A("s_barrier")
    stamp(A)
    for l in g1_reads(G1_SET[0], 0): A(l)
    srd(A, 8, P_WS, 2048 * 8, WS_ST)
    A("s_lshl_b32 s50, s%d, 3" % S_ROW)
    A("v_mov_b32 v173, 0")
    A("s_mov_b64 exec, 1")
    A.vmop("buffer_store_dwordx4 v[%d:%d], v173, s[8:11], s50 offen %s" % (ST4, ST4 + 3, SC), "pst")
    A("s_mov_b64 exec, -1")
    A("s_mul_i32 s%d, s%d, 0x9E3779B1" % (S_NONCE, S_E))
    A("s_add_u32 s%d, s%d, 0x7F4A7C15" % (S_NONCE, S_NONCE))

def prep_tail_items():
    VRP, VCG = 160, 161; VB = 162; RD = 164; VG = 172
    a = ["v_lshrrev_b32 v%d, 3, v0" % VRP, "v_and_b32 v%d, 7, v0" % VCG,
         "v_bfe_u32 v%d, v%d, 2, 3" % (VB, VRP), "v_xor_b32 v%d, v%d, v%d" % (VB, VB, VCG),
         "v_lshlrev_b32 v%d, 4, v%d" % (VB, VB), "v_lshl_add_u32 v%d, v%d, 7, v%d" % (VB, VRP, VB),
         "v_add_u32 v%d, %d, v%d" % (VB, KVT_T, VB),
         "ds_read_b128 v[%d:%d], v%d" % (RD, RD + 3, VB), "ds_read_b128 v[%d:%d], v%d offset:4096" % (RD + 4, RD + 7, VB),
         "v_lshlrev_b32 v%d, 12, v%d" % (VG, VRP), "v_lshl_add_u32 v%d, v%d, 4, v%d" % (VG, VCG, VG),
         "s_add_u32 s12, s%d, 0x%x\ns_addc_u32 s13, s%d, 0\ns_mov_b32 s14, 0x200000\ns_mov_b32 s15, 0x20000" % (P_WS, WS_KVT, P_WS + 1),
         "s_lshl_b32 s54, s%d, 18\ns_lshl_b32 s55, s%d, 7\ns_sub_u32 s55, 3968, s55\ns_add_u32 s54, s54, s55\ns_add_u32 s55, s54, 0x20000" % (S_XCD, S_J)]
    b = [V("buffer_store_dwordx4 v[%d:%d], v%d, s[12:15], s54 offen %s" % (RD, RD + 3, VG, SC), "pst", 1),
         V("buffer_store_dwordx4 v[%d:%d], v%d, s[12:15], s55 offen %s" % (RD + 4, RD + 7, VG, SC), "pst", 1)]
    return a, b

def toeplitz_lines():
    M = Sub(); T = 160
    M("v_add_u32 v%d, %d, v%d" % (TPA + 1, TOEP + 32, TPA))
    for ch in range(2):
        H = TPH + 6 * ch; o = ch * 16640; b = T + 12 * ch
        for i in range(4): M("v_alignbyte_b32 v%d, v%d, v%d, 2" % (b + i, H + i + 1, H + i))
        M("ds_write_b128 v%d, v[%d:%d] offset:%d" % (TPA + 1, H, H + 3, o))
        for i in range(4): M("v_alignbyte_b32 v%d, v%d, v%d, 2" % (b + 4 + i, H + i + 2, H + i + 1))
        M("ds_write_b128 v%d, v[%d:%d] offset:%d" % (TPA + 1, b, b + 3, o + CS))
        for i in range(4): M("v_mov_b32 v%d, v%d" % (b + 8 + i, H + i + 1))
        M("ds_write_b128 v%d, v[%d:%d] offset:%d" % (TPA + 1, b + 4, b + 7, o + 3 * CS))
        M("ds_write_b128 v%d, v[%d:%d] offset:%d" % (TPA + 1, b + 8, b + 11, o + 2 * CS))
    return M.ins()

def toeplitz_head(A):
    Ld = newlabel("toep")
    A("s_cmp_lg_u32 s%d, 0" % S_WV)
    A("s_cbranch_scc1 %s" % Ld)
    T = 184; Z = T + 8
    for i in range(4): A("v_mov_b32 v%d, 0" % (Z + i))
    A("v_lshrrev_b32 v%d, 3, v1" % T)
    A("v_mul_u32_u24 v%d, 16640, v%d" % (T, T))
    A("v_bfe_u32 v%d, v1, 1, 2" % (T + 1))
    A("v_mul_u32_u24 v%d, %d, v%d" % (T + 1, CS, T + 1))
    A("v_add_u32 v%d, v%d, v%d" % (T, T, T + 1))
    A("v_and_b32 v%d, 1, v1" % (T + 1))
    A("v_lshl_add_u32 v%d, v%d, 4, v%d" % (T, T + 1, T))
    A("v_add_u32 v%d, %d, v%d" % (T, TOEP, T))
    A("s_mov_b64 exec, 0xffff")
    A("ds_write_b128 v%d, v[%d:%d]" % (T, Z, Z + 3))
    A("s_mov_b64 exec, 1")
    A("v_mov_b32 v%d, %d" % (T + 2, TOEP))
    for ch in range(2):
        L0 = TPH + 6 * ch; o = ch * 16640
        A("v_alignbyte_b32 v%d, v%d, v%d, 2" % (T + 3, L0, Z))
        A("v_alignbyte_b32 v%d, v%d, v%d, 2" % (T + 4, L0 + 1, L0))
        A("ds_write_b32 v%d, v%d offset:%d" % (T + 2, L0, o + 2 * CS + 28))
        A("ds_write_b32 v%d, v%d offset:%d" % (T + 2, T + 3, o + CS + 28))
        A("ds_write_b32 v%d, v%d offset:%d" % (T + 2, T + 3, o + 3 * CS + 24))
        A("ds_write_b32 v%d, v%d offset:%d" % (T + 2, T + 4, o + 3 * CS + 28))
    A("s_mov_b64 exec, -1")
    A.label(Ld)

def g1_reads(setb, p0):
    L = []
    for kk in range(2):
        p = p0 + kk; b = setb + 16 * kk
        L.append("ds_read_b128 v[%d:%d], v%d" % (b + 12, b + 15, G1_XA + p))
        for f in range(3):
            for h in range(2):
                L.append("ds_read_b64_tr_b16 v[%d:%d], v%d offset:%d" % (b + 4 * f + 2 * h, b + 4 * f + 2 * h + 1, G1_WA + p, 768 * h + 64 * f))
    return L

def g1_mfma(setb, cs=False, first=False):
    L = []
    for kk in range(2):
        b = setb + 16 * kk
        for f in range(3):
            c = "0" if (first and kk == 0) else "v[%d:%d]" % (G1_ACC + 16 * f, G1_ACC + 16 * f + 15)
            L.append("v_mfma_f32_32x32x16_bf16 v[%d:%d], v[%d:%d], v[%d:%d], %s" % (
                G1_ACC + 16 * f, G1_ACC + 16 * f + 15, b + 4 * f, b + 4 * f + 3, b + 12, b + 15, c))
        if cs and kk == 0:
            for f in range(3):
                c = "0" if first else "a[%d:%d]" % (CSA + 16 * f, CSA + 16 * f + 15)
                L.append("v_mfma_f32_32x32x16_bf16 a[%d:%d], v[%d:%d], v[%d:%d], %s" % (
                    CSA + 16 * f, CSA + 16 * f + 15, G1_ONES, G1_ONES + 3, b + 4 * f, b + 4 * f + 3, c))
    return L

def w_load_items(p):
    return ["s_add_u32 s51, s%d, s%d\ns_lshl_b32 s51, s51, 11" % (S_U0, S_WPOS),
            V("buffer_load_dwordx4 a[%d:%d], v%d, s[12:15], s51 offen %s" % (8 * p, 8 * p + 3, WLA, SCL), "W%d" % p, 1),
            "s_add_u32 s%d, s%d, 1\ns_cmp_eq_u32 s%d, s%d\ns_cselect_b32 s%d, 0, s%d" % (S_WPOS, S_WPOS, S_WPOS, S_NU, S_WPOS, S_WPOS),
            V("buffer_load_dwordx4 a[%d:%d], v%d, s[12:15], s51 offen offset:1024 %s" % (8 * p + 4, 8 * p + 7, WLA, SCL), "W%d" % p, 1)]
WP = [0]
def wl(n):
    L = []
    for _ in range(n // 2):
        if WP[0] < 22: L += w_load_items(WP[0]); WP[0] += 1
    return L

def gemm1(A):
    wt = cfg.wtail
    pa_items = ["s_lshl_b32 s52, s%d, 5" % S_XCD, "v_add_u32 v2, s52, v1", "v_lshlrev_b32 v2, 7, v2", "v_add_u32 v2, 0x%x, v2" % (WS_FLAG + FL_P),
                V("s_mov_b64 exec, 0xffffffff\nglobal_load_dword v3, v2, s[%d:%d] %s\ns_mov_b64 exec, -1" % (P_WS, P_WS + 1, SCL), "pa", 1),
                "s_lshl_b32 s52, s%d, 5" % S_CB, "v_add_u32 v%d, s52, v1" % PB, "v_lshlrev_b32 v%d, 7, v%d" % (PB, PB), "v_add_u32 v%d, 0x%x, v%d" % (PB, WS_FLAG + FL_P, PB),
                V("s_mov_b64 exec, 0xffffffff\nglobal_load_dword v%d, v%d, s[%d:%d] %s\ns_mov_b64 exec, -1" % (PB + 1, PB, P_WS, P_WS + 1, SCL), "pb", 1),
                "s_lshl_b32 s52, s%d, 12\ns_add_u32 s52, s52, 0x%x\ns_add_u32 s12, s%d, s52\ns_addc_u32 s13, s%d, 0\ns_mov_b32 s14, 8192\ns_mov_b32 s15, 0x20000" % (S_CH0, WS_KVT, P_WS, P_WS + 1),
                "v_add_u32 v%d, 1, v%d" % (UA + 1, UA),
                "s_add_u32 s8, s%d, 0x%x\ns_addc_u32 s9, s%d, 0\ns_mov_b32 s10, %d\ns_mov_b32 s11, 0x20000" % (P_WS, WS_ST, P_WS + 1, 2048 * 8),
                "v_and_b32 v%d, 7, v1" % (PB + 2), "v_lshlrev_b32 v%d, 2, v%d" % (PB + 2, PB + 2), "v_bfe_u32 v%d, v1, 3, 2" % (PB + 3),
                "v_add_u32 v%d, v%d, v%d" % (PB + 2, PB + 2, PB + 3), "v_lshlrev_b32 v%d, 3, v%d" % (PB + 2, PB + 2),
                "s_lshl_b32 s53, s%d, 2\ns_add_u32 s53, s53, s%d\ns_lshl_b32 s53, s53, 8" % (S_CL, S_WV)]
    u_items = ["v_add_u32 v%d, %d, v%d" % (UA + 1, UB, UA),
               "ds_write_b128 v%d, v[%d:%d]" % (UA + 1, UL, UL + 3), "ds_write_b128 v%d, v[%d:%d] offset:4608" % (UA + 1, UL + 4, UL + 7),
               "v_mov_b32 v164, 0", "v_mov_b32 v165, 0", "v_mov_b32 v166, 0", "v_mov_b32 v167, 0",
               "v_lshrrev_b32 v168, 5, v1", "v_mul_u32_u24 v168, 4608, v168", "v_and_b32 v169, 31, v1",
               "v_lshl_add_u32 v168, v169, 4, v168", "v_add_u32 v168, %d, v168" % (UB + 4096),
               "ds_write_b128 v168, v[164:167]"]
    def lstamp(idx):
        if cfg.lprof:
            A("s_memtime s[96:97]"); A("s_waitcnt lgkmcnt(0)")
            A("v_mov_b32 v238, s96"); A("v_cmp_eq_u32 vcc, %d, v1" % idx); A("v_cndmask_b32 v239, v239, v238, vcc")
    for it in range(8):
        A("s_waitcnt lgkmcnt(0)")
        lstamp(2 * it)
        rdB = g1_reads(G1_SET[1], 2)
        dmx, dmw = g1_dma(it + 3) if it + 3 < 8 else ([], [])
        side = list(dmx)
        if it == 3: side = side + pa_items
        if it >= 5: side = wl(wt[2 * (it - 5)])
        if it == 7: side = side + u_items
        weave2(A, g1_mfma(G1_SET[0], True, it == 0), rdB, side)
        if it < 7:
            if it == 4: A.wait("pb", 0)
            elif it == 1: A("s_waitcnt vmcnt(%d) lgkmcnt(0)" % min(A.cnt("D2"), A.cnt("pst")))
            else: A.wait("D%d" % (it + 1), 0)
            lstamp(2 * it + 1)
            A("s_barrier")
        else:
            A("s_waitcnt lgkmcnt(0)")
        if it == 1: flag_store(A, FL_P)
        if it == 4:
            poll_check(A, 2, 3, 32)
            poll_check(A, PB, PB + 1, 32)
            A.vmop("buffer_load_dwordx4 v[%d:%d], v%d, s[12:15], 0 offen %s" % (UL, UL + 3, UA, SCL), "u")
            A.vmop("buffer_load_dwordx4 v[%d:%d], v%d, s[12:15], 0 offen offset:4095 %s" % (UL + 4, UL + 7, UA + 1, SCL), "u")
            A.vmop("buffer_load_dwordx2 v[%d:%d], v%d, s[8:11], s53 offen %s" % (STV, STV + 1, PB + 2, SCL), "u")
        if it < 7:
            slot_next = (it + 1) % NSLOT
            dx = 16384 if slot_next else -16384 * (NSLOT - 1)
            dw = 12288 if slot_next else -12288 * (NSLOT - 1)
            adv = ["v_add_u32 v%d, %d, v%d" % (G1_XA + p, dx & 0xffffffff, G1_XA + p) for p in range(4)]
            adv += ["v_add_u32 v%d, %d, v%d" % (G1_WA + p, dw & 0xffffffff, G1_WA + p) for p in range(4)]
            rd = g1_reads(G1_SET[0], 0)
            for l in [adv[0], adv[4], adv[1], adv[5]]: A(l)
            side = list(dmw)
            if it >= 5: side = wl(wt[2 * (it - 5) + 1])
            weave2(A, g1_mfma(G1_SET[1]), rd + [adv[2], adv[6], adv[3], adv[7]], side, per=cfg.per2)
            if it == 4:
                A("s_mul_i32 s48, s%d, %d" % (S_CB, 86 * 2048))
                A("s_add_u32 s48, s48, 0x%x" % WS_W2F)
                srd_s(A, 12, 48, 86 * 2048)
                A("s_mov_b32 s%d, s%d" % (S_WPOS, S_ROT))
        else:
            cs_items = ["v_and_b32 v2, 31, v1", "v_lshlrev_b32 v2, 2, v2", "v_add_u32 v2, %d, v2" % CSB,
                        "s_mul_i32 s52, s%d, 384" % S_WV, "v_add_u32 v3, s52, v2"]
            cs_items += ["v_accvgpr_read_b32 v%d, a%d" % (140 + f, CSA + 16 * f) for f in range(3)]
            cs_items += ["ds_write_b32 v3, v140", "ds_write_b32 v3, v141 offset:128", "ds_write_b32 v3, v142 offset:256"]
            weave2(A, g1_mfma(G1_SET[1]), cs_items, wl(wt[5]), per=2)
    stamp(A)
    if cfg.lprof: A("v_accvgpr_write_b32 a255, v239")
    A("s_waitcnt lgkmcnt(0)")
    A("s_barrier")
    stamp(A)
    CSV = 64
    for w in range(4):
        for f in range(3):
            A("ds_read_b32 v%d, v2 offset:%d" % (112 + 3 * w + f, 384 * w + 128 * f))
    cr = conv_reads(CV_S0, 0)
    for l in cr[:3]: A(l)
    A("s_waitcnt lgkmcnt(3)")
    for f in range(3):
        A("v_add_f32 v%d, v%d, v%d" % (112 + f, 112 + f, 115 + f))
        A("v_add_f32 v%d, v%d, v%d" % (118 + f, 118 + f, 121 + f))
    for f in range(3): A("v_add_f32 v%d, v%d, v%d" % (112 + f, 112 + f, 118 + f))
    for f in range(3): A("ds_write_b32 v3, v%d offset:%d" % (112 + f, 1536 + 128 * f))
    A("v_lshrrev_b32 v2, 5, v1")
    A("v_lshlrev_b32 v2, 4, v2")
    A("v_add_u32 v2, %d, v2" % (CSB + 1536))
    A("v_add_u32 v2, s52, v2")
    for f in range(3):
        for g in range(4):
            b = CSV + 16 * f + 4 * g
            A("ds_read_b128 v[%d:%d], v2 offset:%d" % (b, b + 3, 128 * f + 32 * g))
    for l in cr[3:]: A(l)
    NM = 112
    A("v_sub_f32 v%d, 0, v%d" % (NM, STV))
    A("v_mov_b32 v%d, v%d" % (NM + 1, NM))
    srd(A, 16, P_WS, 64 * 86 * 1024, WS_H)
    A("s_lshl_b32 s48, s%d, 2" % S_CL)
    A("s_add_u32 s48, s48, s%d" % S_WV)
    A("s_mul_i32 s48, s48, 86")
    A("s_lshl_b32 s49, s%d, 1" % S_UNIT0)
    A("s_add_u32 s48, s48, s49")
    A("s_lshl_b32 s56, s48, 10")
    A("s_add_u32 s55, s56, 4096")
    VA = 114; PK = 116
    A("v_lshlrev_b32 v%d, 4, v1" % VA)
    A("s_waitcnt lgkmcnt(0)")
    Ls = newlabel("g1s")
    wside = wl(cfg.wepi)
    for f in range(3):
        if f == 2:
            for l in wside: emit(A, l)
            wside = []
            A("s_cmp_ge_u32 s%d, 11" % S_MEM)
            A("s_cbranch_scc1 %s" % Ls)
        for i in range(0, 16, 2):
            a_ = G1_ACC + 16 * f + i; c = CSV + 16 * f + i
            A("v_pk_fma_f32 v[%d:%d], v[%d:%d], v[%d:%d], v[%d:%d]" % (a_, a_ + 1, c, c + 1, NM, NM + 1, a_, a_ + 1))
        P_ = PK + 8 * f
        for i in range(8):
            A("v_cvt_pk_bf16_f32 v%d, v%d, v%d" % (P_ + i, G1_ACC + 16 * f + 2 * i, G1_ACC + 16 * f + 2 * i + 1))
        for i in range(8):
            A("v_pk_max_i16 v%d, v%d, 0" % (P_ + i, P_ + i))
        for h in range(2):
            off = f * 2048 + h * 1024
            so = "s56" if off < 4096 else "s55"
            A.vmop("buffer_store_dwordx4 v[%d:%d], v%d, s[16:19], %s offen offset:%d %s" % (P_ + 4 * h, P_ + 4 * h + 3, VA, so, off % 4096, SC), "hst", certain=(f < 2))
    A.label(Ls)

CV_ACC = 208; CV_S0 = 144; CV_S1 = 64
def conv_reads(setb, r):
    def rdB(d): return ["ds_read_b128 v[%d:%d], v%d offset:%d" % (setb + 32 + 4 * d, setb + 32 + 4 * d + 3, CV_BA, 512 * (7 - d) + 64 * r)]
    def rdA(t): return ["ds_read_b64 v[%d:%d], v%d offset:%d" % (setb + 4 * t, setb + 4 * t + 1, CV_AA, 512 * t + 64 * r),
                        "ds_read_b64 v[%d:%d], v%d offset:%d" % (setb + 4 * t + 2, setb + 4 * t + 3, CV_AA, 512 * t + 64 * r + 8)]
    L = rdB(0)
    for t in range(8): L += rdA(t)
    for d in range(1, 8): L += rdB(d)
    return L
def conv_mfmas(setb, first=False):
    L = []
    for d in range(8):
        for j in range(d, 8):
            t = j - d
            c = "0" if (first and d == 0) else "v[%d:%d]" % (CV_ACC + 4 * j, CV_ACC + 4 * j + 3)
            L.append("v_mfma_f32_16x16x32_bf16 v[%d:%d], v[%d:%d], v[%d:%d], %s" % (
                CV_ACC + 4 * j, CV_ACC + 4 * j + 3, setb + 4 * t, setb + 4 * t + 3, setb + 32 + 4 * d, setb + 32 + 4 * d + 3, c))
    return L

H_V = 64; ACC2 = 176
def hreg(p):
    if p < 6: return 16 + 8 * p
    if p < 8: return 128 + 8 * (p - 6)
    if p < 10: return 240 + 8 * (p - 8)
    return 64 + 8 * (p - 10)
def h_load_items(p):
    b = hreg(p)
    return ["s_add_u32 s51, s%d, s%d\ns_lshl_b32 s51, s51, 10" % (S_U0, S_WPOS),
            V("buffer_load_dwordx4 v[%d:%d], v%d, s[16:19], s51 offen %s" % (b, b + 3, HLA, SCL), "H%d" % p, 1),
            "s_add_u32 s%d, s%d, 1\ns_cmp_eq_u32 s%d, s%d\ns_cselect_b32 s%d, 0, s%d" % (S_WPOS, S_WPOS, S_WPOS, S_NU, S_WPOS, S_WPOS),
            V("buffer_load_dwordx4 v[%d:%d], v%d, s[20:23], s51 offen %s" % (b + 4, b + 7, HLA, SCL), "H%d" % p, 1)]
HLA = 13

def conv(A):
    T = 224 + 16
    sets = [CV_S0, CV_S1]
    rem = list(range(WP[0], 22)); nr = 4 if cfg.wr3 else 3; q_ = (len(rem) + nr - 1) // nr
    wsched = [rem[i * q_:(i + 1) * q_] for i in range(nr)] + [[]] * (4 - nr)
    for r in range(4):
        A("s_waitcnt lgkmcnt(0)")
        if r == cfg.hpub:
            A.wait("hst")
            A("s_barrier")
            flag_store(A, FL_H)
        if r == 3:
            A("s_and_b32 s54, s%d, 1" % S_J)
            poll_addr(A, 2, FL_H, S_XCD, 2, 54)
            poll_issue(A, 2, 3, 16, "ph")
        mf = conv_mfmas(sets[r & 1], r == 0)
        rd = conv_reads(sets[(r + 1) & 1], r + 1) if r < 3 else []
        side = []
        for p in wsched[r]: side += w_load_items(p)
        weave2(A, mf, rd, side, per=1)
    WP[0] = 22
    stamp(A)
    A.wait("ph")
    poll_check(A, 2, 3, 16)
    for tt in range(2):
        d = 16 + 4 * tt
        A("s_lshl_b32 s48, s%d, 1" % S_TB64)
        A("s_add_u32 s48, s48, %d" % tt)
        A("s_mul_i32 s48, s48, %d" % (86 * 1024))
        A("s_add_u32 s48, s48, 0x%x" % WS_H)
        srd_s(A, d, 48, 86 * 1024)
    A("v_lshlrev_b32 v%d, 4, v1" % HLA)
    A("s_mov_b32 s%d, s%d" % (S_WPOS, S_ROT))
    npre1 = min(6, cfg.hpre)
    for p in range(npre1):
        for l in h_load_items(p): emit(A, l)
    E0 = 160
    A("s_barrier")
    A("s_lshl_b32 s50, s%d, 13" % S_WV)
    A("v_lshlrev_b32 v%d, 4, v1" % E0)
    A("v_add_u32 v%d, s50, v%d" % (E0 + 1, E0))
    for j in range(8):
        A("ds_write_b128 v%d, v[%d:%d] offset:%d" % (E0 + 1, CV_ACC + 4 * j, CV_ACC + 4 * j + 3, CVX + 1024 * j))
    A("s_waitcnt lgkmcnt(0)")
    A("s_barrier")
    A("s_lshl_b32 s55, s%d, 16" % S_DV)
    A("s_and_b32 s54, s%d, 0xffff0000" % S_DV)
    A("s_lshl_b32 s50, s%d, 11" % S_WV)
    A("v_add_u32 v%d, s50, v%d" % (E0 + 1, E0))
    R = 64
    for jj in range(2):
        for w in range(4):
            b = R + 16 * jj + 4 * w
            A("ds_read_b128 v[%d:%d], v%d offset:%d" % (b, b + 3, E0 + 1, CVX + 8192 * w + 1024 * jj))
    A("v_and_b32 v%d, 15, v1" % (E0 + 2))
    A("v_lshrrev_b32 v%d, 4, v1" % (E0 + 3))
    A("v_lshlrev_b32 v%d, 5, v%d" % (E0 + 4, E0 + 2))
    A("v_lshl_add_u32 v%d, v%d, 3, v%d" % (E0 + 4, E0 + 3, E0 + 4))
    A("s_lshl_b32 s50, s%d, 10" % S_WV)
    A("s_sub_u32 s50, %d, s50" % (UB + 4088 - 512))
    A("v_sub_u32 v%d, s50, v%d" % (E0 + 4, E0 + 4))
    UU = 96
    for jj in range(2):
        for ch in range(2):
            b = UU + 4 * jj + 2 * ch
            A("ds_read_b64 v[%d:%d], v%d offset:%d" % (b, b + 1, E0 + 4, ch * 4608 + (512 if jj == 0 else 0)))
    for p in range(npre1, cfg.hpre):
        for l in h_load_items(p): emit(A, l)
    srd(A, 8, P_WS, 0x200000, WS_Y2)
    A("s_lshl_b32 s50, s%d, 12" % S_CH0)
    A("s_lshl_b32 s51, s%d, 11" % S_WV)
    A("s_add_u32 s50, s50, s51")
    A("v_lshlrev_b32 v%d, 6, v%d" % (E0 + 5, E0 + 2))
    A("v_lshl_add_u32 v%d, v%d, 4, v%d" % (E0 + 5, E0 + 3, E0 + 5))
    A("s_waitcnt lgkmcnt(0)")
    UF = 104; O = 120
    for jj in range(2):
        for ch in range(2):
            b = R + 16 * jj + 8 * ch
            for i in range(0, 4, 2): pk(A, "v_pk_add_f32", b + i, b + i, b + 4 + i)
            ub = UU + 4 * jj + 2 * ch
            A("v_and_b32 v%d, 0xffff0000, v%d" % (UF + 0, ub + 1))
            A("v_lshlrev_b32 v%d, 16, v%d" % (UF + 1, ub + 1))
            A("v_and_b32 v%d, 0xffff0000, v%d" % (UF + 2, ub))
            A("v_lshlrev_b32 v%d, 16, v%d" % (UF + 3, ub))
            for i in range(4): A("v_fmac_f32 v%d, s%d, v%d" % (b + i, 55 if ch == 0 else 54, UF + i))
        for i in range(4): A("v_cvt_pk_bf16_f32 v%d, v%d, v%d" % (O + 4 * jj + i, R + 16 * jj + i, R + 16 * jj + 8 + i))
    A.vmop("buffer_store_dwordx4 v[%d:%d], v%d, s[8:11], s50 offen %s" % (O, O + 3, E0 + 5, SC), "yst")
    A.vmop("buffer_store_dwordx4 v[%d:%d], v%d, s[8:11], s50 offen offset:1024 %s" % (O + 4, O + 7, E0 + 5, SC), "yst")

XR_ = 208; SV = 216; YR = 220
def gemm2(A):
    PD = 6
    issued = cfg.hpre
    L = newlabel("g2")
    for p in range(22):
        if p == 20:
            A("s_cmp_eq_u32 s%d, 3" % S_WV); A("s_cbranch_scc1 %s" % L)
        A.wait("H%d" % p)
        A.wait("W%d" % p) if p == 0 else None
        mf = []
        for dt in range(2):
            for tt in range(2):
                ac = ACC2 + 16 * (2 * dt + tt); w = 8 * p + 4 * dt; h = hreg(p) + 4 * tt
                c = "0" if p == 0 else "a[%d:%d]" % (ac, ac + 15)
                mf.append("v_mfma_f32_32x32x16_bf16 a[%d:%d], a[%d:%d], v[%d:%d], %s" % (ac, ac + 15, w, w + 3, h, h + 3, c))
        side = []
        while issued < 22 and issued <= p + PD:
            side += h_load_items(issued); issued += 1
            break
        weave2(A, mf, [], side)
        if p == 3:
            A.wait("yst")
            A("s_barrier")
            flag_store(A, FL_Y)
        if p == 12:
            srd(A, 12, P_Q, 0x200000)
            A("s_lshl_b32 s52, s%d, 16" % S_TB64)
            A("s_lshl_b32 s53, s%d, 7" % S_CB)
            A("s_add_u32 s52, s52, s53")
            A("s_add_u32 s53, s52, 0x8000")
        if p == 16:
            A.vmop("buffer_load_dwordx4 v[%d:%d], v%d, s[12:15], s52 offen" % (XR_, XR_ + 3, FN_XO), "fx")
            A.vmop("buffer_load_dwordx4 v[%d:%d], v%d, s[12:15], s53 offen" % (XR_ + 4, XR_ + 7, FN_XO), "fx")
            srd(A, 8, P_WS, 2048 * 8, WS_ST)
            A("s_lshl_b32 s48, s%d, 9" % S_TB64)
            A.vmop("buffer_load_dwordx2 v[%d:%d], v%d, s[8:11], s48 offen %s" % (SV, SV + 1, FN_ST, SCL), "fx")
            A.vmop("buffer_load_dwordx2 v[%d:%d], v%d, s[8:11], s48 offen offset:256 %s" % (SV + 2, SV + 3, FN_ST, SCL), "fx")
            poll_addr(A, 2, FL_Y, S_CB)
            poll_issue(A, 2, 3, 32, "py")
    A.label(L)

def final(A):
    A("s_waitcnt vmcnt(0)")
    poll_check(A, 2, 3, 32)
    srd(A, 8, P_WS, 0x200000, WS_Y2)
    srd(A, 20, P_OUT, 0x200000)
    A("s_lshl_b32 s48, s%d, 18" % S_CB)
    A("s_lshl_b32 s49, s%d, 8" % S_TB64)
    A("s_add_u32 s48, s48, s49")
    A("s_add_u32 s49, s48, 0x20000")
    A("buffer_load_dwordx4 v[%d:%d], v%d, s[8:11], s48 offen %s" % (YR, YR + 3, FN_YG, SCL))
    A("buffer_load_dwordx4 v[%d:%d], v%d, s[8:11], s49 offen %s" % (YR + 4, YR + 7, FN_YG, SCL))
    A("s_barrier")
    for dt in range(2):
        for tt in range(2):
            ac = ACC2 + 16 * (2 * dt + tt)
            for g in range(4):
                A("ds_write_b128 v%d, a[%d:%d] offset:%d" % (FN_RW, ac + 4 * g, ac + 4 * g + 3, RED + tt * 32 * 272 + dt * 128 + g * 32))
    A("s_waitcnt vmcnt(0)")
    A("ds_write_b128 v%d, v[%d:%d]" % (FN_YL, YR, YR + 3))
    A("ds_write_b128 v%d, v[%d:%d] offset:%d" % (FN_YL, YR + 4, YR + 7, 16 * 272))
    A("s_waitcnt lgkmcnt(0)")
    A("s_barrier")
    stamp(A)
    P = 64; YV = 44
    def fin_reads(i):
        for w in range(4):
            for hlf in range(2):
                b = P + 32 * i + 8 * w + 4 * hlf
                A("ds_read_b128 v[%d:%d], v%d offset:%d" % (b, b + 3, FN_RD, RED + w * 17408 + i * 32 * 272 + 16 * hlf))
        for k in range(4):
            A("ds_read_b32 v%d, v%d offset:%d" % (YV + 4 * i + k, FN_YR, k * 272 + i * 128))
    fin_reads(0)
    A("s_mov_b32 s54, 0xbfb8aa3b")
    E = 128; F = 136; Gx = 144; O = 152; B2 = 160; XU = 168
    for i in range(2):
        A("v_mov_b32 v%d, v%d" % (B2 + 4 * i, SV + 2 * i)); A("v_mov_b32 v%d, v%d" % (B2 + 4 * i + 1, SV + 2 * i))
        A("v_mov_b32 v%d, v%d" % (B2 + 4 * i + 2, SV + 2 * i + 1)); A("v_mov_b32 v%d, v%d" % (B2 + 4 * i + 3, SV + 2 * i + 1))
        unpack(A, XU + 16 * i, XR_ + 4 * i, 4)
        for e in range(0, 8, 2): pk(A, "v_pk_add_f32", XU + 16 * i + 8 + e, XU + 16 * i + e, B2 + 4 * i, None, NEG1)
        for e in range(0, 8, 2): pk(A, "v_pk_mul_f32", XU + 16 * i + 8 + e, XU + 16 * i + 8 + e, B2 + 4 * i + 2)
    for i in range(2):
        A("s_waitcnt lgkmcnt(0)")
        if i == 0: fin_reads(1)
        b = P + 32 * i
        for e in range(0, 8, 2):
            pk(A, "v_pk_add_f32", b + e, b + e, b + 8 + e)
            pk(A, "v_pk_add_f32", b + 16 + e, b + 16 + e, b + 24 + e)
        for e in range(0, 8, 2): pk(A, "v_pk_add_f32", b + e, b + e, b + 16 + e)
        for e in range(0, 8, 2): pk(A, "v_pk_mul_f32", b + e, b + e, B2 + 4 * i + 2)
        for e in range(8): A("v_mul_f32 v%d, s54, v%d" % (E + e, b + e))
        for e in range(8): A("v_exp_f32 v%d, v%d" % (E + e, E + e))
        unpack(A, F, YV + 4 * i, 4)
        for e in range(8): A("v_add_f32 v%d, 1.0, v%d" % (E + e, E + e))
        for e in range(8): A("v_rcp_f32 v%d, v%d" % (E + e, E + e))
        for e in range(0, 8, 2): pk(A, "v_pk_mul_f32", F + e, F + e, XU + 16 * i + 8 + e)
        for e in range(0, 8, 2): pk(A, "v_pk_mul_f32", F + e, F + e, b + e)
        for e in range(0, 8, 2): pk(A, "v_pk_fma_f32", Gx + e, F + e, E + e, XU + 16 * i + e)
        for e in range(4): A("v_cvt_pk_bf16_f32 v%d, v%d, v%d" % (O + 4 * i + e, Gx + 2 * e, Gx + 2 * e + 1))
        A("buffer_store_dwordx4 v[%d:%d], v%d, s[20:23], s%d offen %s" % (O + 4 * i, O + 4 * i + 3, FN_XO, 52 + i, cfg.outsc))

def epoch_update(A):
    L = newlabel("ep")
    A("s_cmp_lg_u32 s2, 0"); A("s_cbranch_scc1 %s" % L)
    A("s_cmp_lg_u32 s%d, 0" % S_WV); A("s_cbranch_scc1 %s" % L)
    A("s_mov_b32 s54, 0")
    poll_addr(A, 2, FL_Y, 54, 32)
    A("s_mov_b64 exec, 0xff")
    A("global_load_dword v3, v2, s[%d:%d] %s" % (P_WS, P_WS + 1, SCL))
    A("s_waitcnt vmcnt(0)")
    poll_check(A, 2, 3, 8)
    A("s_add_u32 s48, s%d, 1" % S_E)
    A("v_mov_b32 v3, s48")
    A("v_mov_b32 v2, 0x%x" % WS_FLAG)
    A("s_mov_b64 exec, 1")
    A("global_store_dword v2, v3, s[%d:%d] %s" % (P_WS, P_WS + 1, SC))
    A.label(L)

def prof_store(A):
    if not cfg.prof: return
    stamp(A)
    A("s_memtime s[100:101]")
    n = NST[0]
    A("s_waitcnt lgkmcnt(0)")
    A("s_cmp_lg_u32 s%d, 0" % S_WV); A("s_cbranch_scc1 L_end")
    A("s_lshl_b32 s48, s2, 7")
    A("s_add_u32 s48, s48, 0x%x" % WS_PROF)
    A("s_add_u32 s50, s%d, s48" % P_WS); A("s_addc_u32 s51, s%d, 0" % (P_WS + 1))
    A("v_mov_b32 v2, 0")
    A("s_mov_b64 exec, 1")
    for i in range(n):
        A("v_mov_b32 v3, s%d" % (72 + 2 * i))
        A("global_store_dword v2, v3, s[50:51] offset:%d" % (4 * i))
        A("s_nop 1")
    A("v_mov_b32 v3, %d" % n)
    A("global_store_dword v2, v3, s[50:51] offset:124")
    A("s_sub_u32 s48, s100, s98")
    A("v_mov_b32 v4, s48")
    A("global_store_dword v2, v4, s[50:51] offset:120")
    if cfg.lprof:
        A("s_mov_b64 exec, 0xffff")
        A("v_accvgpr_read_b32 v5, a255")
        A("v_lshlrev_b32 v6, 2, v1")
        A("s_lshl_b32 s48, s2, 6")
        A("s_add_u32 s48, s48, 0x%x" % (WS_PROF + 0x20000))
        A("v_add_u32 v6, s48, v6")
        A("global_store_dword v6, v5, s[%d:%d]" % (P_WS, P_WS + 1))
        A("s_mov_b64 exec, 1")
    if cfg.dbgstamps:
        A("s_cmp_lg_u32 s2, 0"); A("s_cbranch_scc1 L_end")
        for i in range(n):
            A("s_sub_u32 s48, s%d, s72" % (72 + 2 * i))
            A("v_mov_b32 v3, s48")
            A("global_store_dword v2, v3, s[%d:%d] offset:%d" % (P_DBG, P_DBG + 1, 4 * i))
            A("s_nop 1")

def build():
    A = G(); name = KN + "_kernel"
    NST[0] = 0; WP[0] = 0
    prologue(A, name)
    prep(A)
    gemm1(A)
    stamp(A)
    conv(A)
    stamp(A)
    gemm2(A)
    stamp(A)
    final(A)
    epoch_update(A)
    prof_store(A)
    A.label("L_end")
    A("s_endpgm")
    lines, added, probs = pad_hazards(A.lines)
    hdr = ["; H3 long-conv + gated MLP, single persistent launch (generated by a hand-written generator script)",
           "; @launch grid=(256,1,1) block=(256,1,1) lds=%d" % LDS_TOTAL,
           '.amdgcn_target "amdgcn-amd-amdhsa--gfx950"', ".text"]
    desc = ['.section .rodata,"a"', ".p2align 6", ".amdhsa_kernel %s" % name,
            "  .amdhsa_next_free_vgpr 512", "  .amdhsa_next_free_sgpr 102", "  .amdhsa_accum_offset 256",
            "  .amdhsa_group_segment_fixed_size 0", "  .amdhsa_kernarg_size 96", "  .amdhsa_user_sgpr_count 2",
            "  .amdhsa_user_sgpr_kernarg_segment_ptr 1", "  .amdhsa_system_sgpr_workgroup_id_x 1",
            "  .amdhsa_float_denorm_mode_32 3", "  .amdhsa_float_denorm_mode_16_64 3", ".end_amdhsa_kernel"]
    return "\n".join(hdr + lines + desc) + "\n"

if __name__ == "__main__":
    out = sys.argv[1]
    for a_ in sys.argv[2:]:
        if a_ == "prof": cfg.prof = True
        if a_ == "dbg": cfg.prof = True; cfg.dbgstamps = True
        if a_ == "lprof": cfg.lprof = True
        if a_ == "cyc": cfg.cyc = True
        if a_.startswith("wtail="): cfg.wtail = [int(x) for x in a_[6:].split(",")]
        if a_.startswith("wepi="): cfg.wepi = int(a_[5:])
        if a_.startswith("hpre="): cfg.hpre = int(a_[5:])
        if a_ == "outwt": cfg.outsc = SC
        if a_.startswith("per2="): cfg.per2 = int(a_[5:])
        if a_ == "nokrot": cfg.krot = False
        if a_ == "nocpf": cfg.cpf = False
        if a_.startswith("wrotx="): cfg.wrotx = int(a_[6:])
        if a_.startswith("hpub="): cfg.hpub = int(a_[5:])
    open(out, "w").write(build()); print("wrote", out)
```
